```python
import torch

def _softmax(x, axis=-1):
    return torch.softmax(x, dim=axis)

def _gelu(x):
    return torch.nn.functional.gelu(x, approximate='tanh')

def _silu(x):
    return torch.nn.functional.silu(x)

def _sigmoid(x):
    return torch.sigmoid(x)

def _layernorm(x, axis=-1, eps=1e-05):
    m = x.mean(dim=axis, keepdim=True)
    v = x.var(dim=axis, keepdim=True, unbiased=False)
    return (x - m) / torch.sqrt(v + eps)

def _scatter_add(tgt, idx, src, axis=0):
    return tgt.clone().index_add_(axis, idx, src)

def _segment_sum(src, seg, n):
    out = torch.zeros((n,) + src.shape[1:], dtype=src.dtype)
    return out.index_add_(0, seg, src)

def _pad(x, pw):
    flat = tuple((v for pair in reversed(pw) for v in pair))
    return torch.nn.functional.pad(x, flat)
kernel_name = 'standalone__tensor_product_equiv_equiformer__graph'

def setup_inputs():

    _w = lambda a: (lambda t: t.to(torch.bfloat16) if t.is_floating_point() else t)(torch.as_tensor(a))
    N, deg, C, De = (12500, 64, 64, max(4, 1))
    E = N * deg
    src = (lambda lo, hi, *s: torch.randint(lo, hi, s))(0, N, E).to(torch.int64)
    dst = (lambda lo, hi, *s: torch.randint(lo, hi, s))(0, N, E).to(torch.int64)
    rvec = (lambda *s: torch.randn(*s, dtype=torch.bfloat16) * 0.05)(E, 3).to(float)
    rn = (torch.linalg.norm(rvec, dim=-1, keepdim=True) + 1e-06).to(float)
    rhat = (rvec / rn).to(float)
    eps = torch.zeros((3, 3, 3), dtype=float)
    eps[0, 1, 2] = eps[1, 2, 0] = eps[2, 0, 1] = 1.0
    eps[0, 2, 1] = eps[2, 1, 0] = eps[1, 0, 2] = -1.0
    return {'x': _w((lambda *s: torch.randn(*s, dtype=torch.bfloat16) * 0.4)(N, 4 * C).to(float)), 'rhat': _w(rhat), 'e_attr': _w((lambda *s: torch.randn(*s, dtype=torch.bfloat16) * 0.4)(E, De).to(float)), 'src': _w(src), 'dst': _w(dst), 'w_rad': _w((lambda *s: torch.randn(*s, dtype=torch.bfloat16) * 0.4)(De, 5 * C).to(float)), 'w_si0': _w((lambda *s: torch.randn(*s, dtype=torch.bfloat16) * 0.4)(2 * C, C).to(float)), 'w_si1': _w((lambda *s: torch.randn(*s, dtype=torch.bfloat16) * 0.05)(3 * C, C).to(float)), 'cg_eps': _w(eps)}

def reference(x, rhat, e_attr, src, dst, w_rad, w_si0, w_si1, cg_eps):
    N = x.shape[0]
    C = w_si0.shape[1]
    E = rhat.shape[0]
    x0 = x[:, :C].clone()
    x1 = x[:, C:].reshape(N, 3, C)
    R = (e_attr @ w_rad).reshape(E, 5, C)
    f0 = x0[src]
    f1 = x1[src]
    Y1 = rhat
    p00_0 = f0 * R[:, 0, :]
    p11_0 = torch.einsum('ejc,ej->ec', f1, Y1) * R[:, 1, :]
    p01_1 = torch.einsum('ec,ej->ejc', f0, Y1) * R[:, 2, :][:, None, :]
    p10_1 = f1 * R[:, 3, :][:, None, :]
    p11_1 = torch.einsum('ijk,ekc,ej->eic', cg_eps, f1, Y1) * R[:, 4, :][:, None, :]
    m0 = torch.concatenate([p00_0, p11_0], axis=-1) @ w_si0
    m1 = torch.einsum('ejp,pc->ejc', torch.concatenate([p01_1, p10_1, p11_1], axis=-1), w_si1)
    agg0 = _segment_sum(m0, dst, N)
    agg1 = _segment_sum(m1.reshape(E, 3 * C), dst, N).reshape(N, 3, C)
    gate = _sigmoid(agg0)
    out1 = agg1 * gate[:, None, :]
    return torch.concatenate([agg0, out1.reshape(N, 3 * C)], axis=-1)
```

```python
import sys

N = 12500; E = 800000; CHUNK = 3200; NCH = 250; NB = 256; NPB = 49
REC_OFF = 0
BYT_OFF = NCH * CHUNK * 16
TAB_OFF = BYT_OFF + NCH * CHUNK
WZ_OFF = TAB_OFF + 256 * 1024
WF_OFF = WZ_OFF + 16384

L = []
def A(s=""):
    for ln in s.split("\n"):
        L.append(ln)

HEADER = """; Kernarg layout for this problem (96 bytes, ptrs only, base s[0:1]):
; applies the radial weights, the two linear maps and the gate."""

def dpp_scan(v):
    for sh in (1, 2, 4, 8):
        A("    s_nop 1")
        A(f"    v_add_u32_dpp {v}, {v}, {v} row_shr:{sh} row_mask:0xf bank_mask:0xf")
    A("    s_nop 1")
    A(f"    v_add_u32_dpp {v}, {v}, {v} row_bcast:15 row_mask:0xa bank_mask:0xf")
    A("    s_nop 1")
    A(f"    v_add_u32_dpp {v}, {v}, {v} row_bcast:31 row_mask:0xc bank_mask:0xf")

K1_STG = 0; K1_BYT = 51200; K1_CNT = 54400; K1_BASE = 55424; K1_LDS = 56448

def gen_k1():
    A(".p2align 8")
    A(".type bin_kernel,@function")
    A("bin_kernel:")
    A(f"""    s_cmp_ge_u32 s2, 256
    s_cbranch_scc1 K1_END
    s_load_dwordx4 s[4:7], s[0:1], 8
    s_load_dwordx4 s[8:11], s[0:1], 24
    s_load_dwordx4 s[12:15], s[0:1], 40
    s_load_dwordx2 s[16:17], s[0:1], 56    ; w_si1
    s_load_dwordx2 s[18:19], s[0:1], 88    ; ws
    s_cmp_ge_u32 s2, {NCH}
    s_cbranch_scc1 K1_PREP
    s_mul_i32 s3, s2, {CHUNK//4}
    v_add_u32 v1, s3, v0
    v_lshlrev_b32 v2, 4, v1
    v_lshlrev_b32 v3, 5, v1
    v_mul_u32_u24 v28, 24, v1
    v_and_b32 v29, 255, v0
    v_lshlrev_b32 v29, 2, v29
    v_mov_b32 v30, 0
    ds_write_b32 v29, v30 offset:{K1_CNT}
    v_cmp_gt_u32 vcc, {CHUNK//4}, v0
    s_mov_b64 s[20:21], vcc
    s_mov_b64 exec, vcc
    s_waitcnt lgkmcnt(0)
    global_load_dwordx4 v[4:7], v2, s[10:11]            ; dst
    global_load_dwordx4 v[8:11], v2, s[8:9]             ; src
    global_load_dwordx4 v[12:15], v3, s[6:7]            ; e_attr
    global_load_dwordx4 v[16:19], v3, s[6:7] offset:16
    global_load_dwordx3 v[20:22], v28, s[4:5]           ; rhat
    global_load_dwordx3 v[24:26], v28, s[4:5] offset:12
    s_barrier
    v_mov_b32 v30, 1
    s_movk_i32 s22, -{NPB}
    s_waitcnt vmcnt(5)""")
    for i in range(4):
        A(f"    v_mul_u32_u24 v{32+i}, 21400, v{4+i}")
    for i in range(4):
        A(f"    v_lshrrev_b32 v{32+i}, 20, v{32+i}          ; bucket")
    for i in range(4):
        A(f"    v_mad_i32_i24 v{4+i}, v{32+i}, s22, v{4+i}")
    for i in range(4):
        A(f"    v_lshlrev_b32 v{32+i}, 2, v{32+i}")
        A(f"    ds_add_rtn_u32 v{36+i}, v{32+i}, v30 offset:{K1_CNT}")
    A(f"""    s_mov_b64 exec, -1
    v_and_b32 v1, 63, v0
    v_lshlrev_b32 v2, 4, v1
    s_waitcnt lgkmcnt(0)
    s_barrier
    ds_read_b128 v[40:43], v2 offset:{K1_CNT}
    s_waitcnt lgkmcnt(0)
    v_add_u32 v45, v40, v41
    v_add_u32 v46, v45, v42
    v_add_u32 v47, v46, v43
    v_mov_b32 v48, v47""")
    dpp_scan("v48")
    A(f"""    v_sub_u32 v52, v48, v47
    v_add_u32 v53, v52, v40
    v_add_u32 v54, v52, v45
    v_add_u32 v55, v52, v46
    ds_write_b128 v2, v[52:55] offset:{K1_BASE}
    v_readfirstlane_b32 s23, v0
    s_mov_b64 exec, s[20:21]
    s_waitcnt lgkmcnt(0)""")
    for i in range(4):
        A(f"    ds_read_b32 v{32+i}, v{32+i} offset:{K1_BASE}")
    A(f"""    s_cmp_lt_u32 s23, 768
    s_cbranch_scc1 K1_NOTAB
    s_mov_b64 exec, -1
    s_and_b32 s24, s2, 7
    s_lshl_b32 s24, s24, 5
    s_lshr_b32 s25, s2, 3
    s_add_u32 s24, s24, s25
    s_lshl_b32 s24, s24, 2
    s_add_u32 s24, s24, {TAB_OFF}
    v_lshlrev_b32 v44, 12, v1
    v_add_u32 v44, s24, v44""")
    for i in range(4):
        A(f"    v_lshl_or_b32 v{56+i}, v{40+i}, 16, v{52+i}")
        A(f"    global_store_dword v44, v{56+i}, s[18:19] offset:{1024*i}")
    A(f"""    s_mov_b64 exec, s[20:21]
    s_waitcnt vmcnt(4)
    s_branch K1_TABDONE
K1_NOTAB:
    s_waitcnt vmcnt(0)
K1_TABDONE:
    s_mov_b32 s24, 0x05040100
    v_alignbit_b32 v28, v22, v21, 16
    v_alignbit_b32 v29, v9, v22, 16
    v_perm_b32 v21, v8, v21, s24
    v_alignbit_b32 v30, v26, v25, 16
    v_alignbit_b32 v31, v11, v26, 16
    v_perm_b32 v25, v10, v25, s24
    s_waitcnt lgkmcnt(0)""")
    ypair = [20, 28, 24, 30]
    for i in range(4):
        A(f"    v_add_u32 v{32+i}, v{32+i}, v{36+i}")
        A(f"    v_lshlrev_b32 v{36+i}, 4, v{32+i}")
        A(f"    ds_write2_b64 v{36+i}, v[{12+2*i}:{13+2*i}], v[{ypair[i]}:{ypair[i]+1}] offset0:0 offset1:1")
        A(f"    ds_write_b8 v{32+i}, v{4+i} offset:{K1_BYT}")
    A(f"""    v_lshlrev_b32 v2, 4, v0
    s_mul_i32 s24, s2, {CHUNK*16}
    s_mul_i32 s25, s2, {CHUNK}
    s_add_u32 s25, s25, {BYT_OFF}
    v_add_u32 v3, s24, v2
    v_add_u32 v4, {1*12800}, v3
    v_add_u32 v5, {2*12800}, v3
    v_add_u32 v6, {3*12800}, v3
    v_add_u32 v7, s25, v2
    s_waitcnt lgkmcnt(0)
    s_barrier""")
    for i in range(4):
        A(f"    ds_read_b128 v[{8+4*i}:{11+4*i}], v2 offset:{12800*i}")
    for i in range(4):
        A(f"    s_waitcnt lgkmcnt({3-i})")
        A(f"    global_store_dwordx4 v{3+i}, v[{8+4*i}:{11+4*i}], s[18:19]")
    A(f"""    v_cmp_gt_u32 vcc, {CHUNK//16}, v0
    s_and_b64 exec, exec, vcc
    s_cbranch_execz K1_END
    ds_read_b128 v[24:27], v2 offset:{K1_BYT}
    s_waitcnt lgkmcnt(0)
    global_store_dwordx4 v7, v[24:27], s[18:19]
    s_endpgm
K1_PREP:
    v_cmp_gt_u32 vcc, 512, v0
    s_and_b64 exec, exec, vcc
    s_cbranch_execz K1_END
    v_and_b32 v1, 63, v0                    ; lane
    s_waitcnt lgkmcnt(0)
    s_cmp_eq_u32 s2, {NCH}
    s_cbranch_scc0 K1_WF
    v_lshrrev_b32 v2, 6, v0                 ; t
    v_and_b32 v3, 7, v1
    v_lshl_add_u32 v3, v3, 3, v2            ; channel
    v_lshrrev_b32 v4, 4, v1                 ; j
    v_bfe_u32 v5, v1, 3, 1                  ; k&1
    v_mov_b32 v6, 0xC4123330
    v_mov_b32 v7, 0x1C4241C2
    v_cmp_gt_u32 vcc, 2, v4
    v_and_b32 v8, 1, v4
    v_lshl_add_u32 v8, v8, 2, v5            ; ((j&1)*4 + (k&1))
    v_cndmask_b32 v6, v7, v6, vcc
    v_lshlrev_b32 v9, 4, v0
    v_add_u32 v9, {WZ_OFF}, v9""")
    for h in range(2):
        A(f"""    v_add_u32 v10, {2*h}, v8
    v_lshlrev_b32 v10, 2, v10
    v_bfe_u32 v11, v6, v10, 4               ; code
    v_and_b32 v12, 7, v11
    v_lshl_add_u32 v12, v12, 6, v3
    v_lshlrev_b32 v12, 1, v12
    v_lshrrev_b32 v11, 3, v11
    v_lshlrev_b32 v11, 31, v11""")
        for r in range(4):
            A(f"    global_load_short_d16_hi v{16+r}, v12, s[12:13] offset:{640*r}")
        A("    s_waitcnt vmcnt(0)")
        for r in range(4):
            A(f"    v_and_b32 v{16+r}, 0xffff0000, v{16+r}")
            A(f"    v_xor_b32 v{20+4*h+r}, v11, v{16+r}")
        A(f"    global_store_dwordx4 v9, v[{20+4*h}:{23+4*h}], s[18:19]")
        A(f"    v_add_u32 v9, 8192, v9")
    A(f"""    s_endpgm
K1_WF:
    s_sub_u32 s3, s2, {NCH+1}
    s_sub_u32 s4, s3, 2
    s_cmp_lt_u32 s3, 2
    s_cselect_b32 s20, s14, s16
    s_cselect_b32 s21, s15, s17
    s_cselect_b32 s4, s3, s4
    s_lshl_b32 s4, s4, 13
    v_lshrrev_b32 v2, 8, v0                 ; s
    v_lshrrev_b32 v3, 4, v1                 ; g
    v_lshl_add_u32 v2, v2, 2, v3            ; 4s+g
    v_lshlrev_b32 v2, 10, v2                ; *8 rows *128 B
    v_bfe_u32 v3, v0, 6, 2                  ; t
    v_and_b32 v4, 15, v1
    v_lshl_add_u32 v3, v3, 4, v4            ; o
    v_lshl_add_u32 v2, v3, 1, v2
    v_add_u32 v2, s4, v2""")
    for i in range(8):
        A(f"    global_load_ushort v{8+i}, v2, s[20:21] offset:{128*i}")
    A(f"""    s_lshl_b32 s3, s3, 13
    s_add_u32 s3, s3, {WF_OFF}
    v_lshlrev_b32 v5, 4, v0
    v_add_u32 v5, s3, v5
    s_waitcnt vmcnt(0)""")
    for q in range(4):
        A(f"    v_lshl_or_b32 v{16+q}, v{9+2*q}, 16, v{8+2*q}")
    A("""    global_store_dwordx4 v5, v[16:19], s[18:19]
K1_END:
    s_endpgm""")

ZS = 2080
Z_OFF = 0
RECL = NPB * ZS
CNTL = 162816
CAP = (CNTL - RECL) // 16
ONES = CNTL + 256
QW = ONES + 512
MAXW = QW + 4
K2_LDS = MAXW + 4

vAb, vYb, vSb, vFl, vCol, vZw, vBase, vPc = [f"v{i}" for i in range(8)]
vItem = "v8"; vA = "v9"; vY = "v10"; vS = "v11"
AF = 12; BT = 16; ST = 24; RAW = 32; ACC = 64; WW = 96
sX = "s[8:11]"
sWS = "s[12:13]"
sN0 = "s14"; sNN = "s15"; sWave = "s16"; sQuota = "s17"; sJ = "s18"; sRound = "s19"; sMax = "s20"
sItem = "s21"; sH = "s22"; sNode = "s23"; sP16 = "s24"; sRem = "s25"; sSelLo = "s26"; sSelHi = "s27"
sT = "s28"; sT2 = "s29"; sNN2 = "s30"; sB = "s3"
MASK = 32
sBYT = "s[48:49]"

def kstep(nq, first):
    n = 2 * nq
    A(f"    v_add_u32 {vS}, {sP16}, {vSb}")
    A(f"    v_add_u32 {vA}, {sP16}, {vAb}")
    A(f"    v_mad_u32_u24 {vY}, {vFl}, {sP16}, {vYb}")
    for i in range(n):
        A(f"    ds_read_u16 v{RAW+4*i}, {vS} offset:{64*i}")
    na = min(n, 6)
    for i in range(na):
        A(f"    ds_read_u16_d16_hi v{ST+i}, {vA} offset:{64*i}")
    for i in range(n):
        if i % 2 == 0:
            A(f"    s_waitcnt lgkmcnt({n-2-i+na})")
        A(f"    v_lshl_add_u32 v{RAW+4*i}, v{RAW+4*i}, 9, {vCol}")
        A(f"    buffer_load_dwordx4 v[{RAW+4*i}:{RAW+4*i+3}], v{RAW+4*i}, {sX}, 0 offen")
    for i in range(na, n):
        A(f"    ds_read_u16_d16_hi v{ST+i}, {vA} offset:{64*i}")
    for i in range(n):
        A(f"    ds_read_u16_d16_hi v{BT+i}, {vY} offset:{64*i}")
    A("    s_waitcnt lgkmcnt(0)")
    for i in range(n):
        A(f"    v_mul_f32 v{ST+i}, v{ST+i}, v{BT+i}")
    for q in range(nq):
        A(f"    v_cvt_pk_bf16_f32 v{AF+q}, v{ST+2*q}, v{ST+2*q+1}")
    for q in range(nq, 4):
        A(f"    v_mov_b32 v{AF+q}, 0")
        A(f"    v_mov_b32 v{BT+q}, 0")
        A(f"    v_mov_b32 v{BT+4+q}, 0")
    A("    s_waitcnt vmcnt(0)")
    def perms(t):
        b = BT + 4 * (t & 1)
        sel = sSelHi if (t & 1) else sSelLo
        for q in range(nq):
            A(f"    v_perm_b32 v{b+q}, v{RAW+4*(2*q+1)+(t>>1)}, v{RAW+4*(2*q)+(t>>1)}, {sel}")
    def mfma(t):
        b = BT + 4 * (t & 1)
        c = "0" if first else f"v[{ACC+4*t}:{ACC+4*t+3}]"
        A(f"    v_mfma_f32_16x16x32_bf16 v[{ACC+4*t}:{ACC+4*t+3}], v[{AF}:{AF+3}], v[{b}:{b+3}], {c}")
    perms(0)
    for t in range(8):
        if t < 7:
            perms(t + 1)
            if nq == 1 and t == 0:
                A("    s_nop 0")
        else:
            A("    s_nop 0")
        mfma(t)

def gen_k2():
    A(".p2align 8")
    A(".type agg_kernel,@function")
    A("agg_kernel:")
    A(f"""    s_cmp_ge_u32 s2, 256
    s_cbranch_scc1 K2_END
    s_load_dwordx2 s[8:9], s[0:1], 0       ; x
    s_load_dwordx2 s[6:7], s[0:1], 72      ; out
    s_load_dwordx2 {sWS}, s[0:1], 88       ; ws
    s_and_b32 {sB}, s2, 7
    s_lshl_b32 {sB}, {sB}, 5
    s_lshr_b32 {sT}, s2, 3
    s_add_u32 {sB}, {sB}, {sT}             ; bucket
    s_mul_i32 {sN0}, {sB}, {NPB}
    s_sub_u32 {sNN}, {N}, {sN0}
    s_min_u32 {sNN}, {sNN}, {NPB}
    s_lshl_b32 {sNN2}, {sNN}, 1
    v_lshrrev_b32 v1, 6, v0
    s_mov_b32 s10, {N*512}
    v_readfirstlane_b32 {sWave}, v1
    s_mov_b32 s11, 0x00020000
    s_mov_b32 {sSelLo}, 0x05040100
    s_mov_b32 {sSelHi}, 0x07060302
    s_mov_b32 {sQuota}, 32
    s_mov_b32 {sJ}, 0
    s_mov_b32 {sRound}, 0
    v_mov_b32 v127, v0
    v_and_b32 v126, 63, v0                 ; lane
    v_lshlrev_b32 v20, 6, v126
    v_add_u32 v20, {ONES}, v20
    v_mov_b32 v21, 0x3f80
    v_mov_b32 v22, {MAXW}
    v_mov_b32 v23, 0
    s_mov_b64 exec, 0xff
    ds_write_b16 v20, v21
    s_mov_b64 exec, 1
    ds_write_b32 v22, v23
    s_mov_b64 exec, -1
    v_lshrrev_b32 v20, 4, v126             ; g
    v_and_b32 v21, 15, v126                ; n / m
    v_lshlrev_b32 v22, 4, v20
    v_add_u32 v22, {RECL}, v22             ; REC + g*16
    v_and_b32 v23, 3, v126                 ; d
    v_lshl_add_u32 {vAb}, v23, 1, v22
    v_add_u32 {vSb}, 14, v22
    v_lshrrev_b32 v23, 2, v21
    v_lshl_add_u32 {vYb}, v23, 1, v22
    v_add_u32 {vYb}, 6, {vYb}
    v_cmp_ne_u32 vcc, 0, v23
    v_mov_b32 v24, {ONES}
    v_lshlrev_b32 {vZw}, 9, v20
    v_cndmask_b32 {vYb}, v24, {vYb}, vcc
    v_cndmask_b32 {vFl}, 0, 1, vcc
    v_lshl_add_u32 {vZw}, v21, 4, {vZw}    ; j*512 + n*16
    s_waitcnt lgkmcnt(0)
    s_add_u32 s48, s12, {BYT_OFF}
    s_addc_u32 s49, s13, 0
K2_ROUND:
    v_mbcnt_lo_u32_b32 v126, -1, 0
    v_mbcnt_hi_u32_b32 v126, -1, v126      ; lane
    s_lshl_b32 {sT}, {sWave}, 6
    v_add_u32 v127, {sT}, v126             ; tid
    s_lshl_b32 {sT}, {sB}, 10
    s_add_u32 {sT}, {sT}, {TAB_OFF}
    v_and_b32 v16, 0x3fc, v127
    v_add_u32 v16, {sT}, v16
    global_load_dword v17, v16, {sWS}
    v_lshlrev_b32 v20, 2, v126
    v_add_u32 v20, {CNTL}, v20
    v_mov_b32 v21, 0
    v_mov_b32 v22, {QW}
    v_mov_b32 v23, 16
    s_cmp_lg_u32 {sWave}, 0
    s_cbranch_scc1 K2_NOZERO
    ds_write_b32 v20, v21
    s_mov_b64 exec, 1
    ds_write_b32 v22, v23
    s_mov_b64 exec, -1
K2_NOZERO:
    v_lshrrev_b32 v18, 2, v127             ; col
    v_and_b32 v19, 31, v18
    v_lshrrev_b32 v18, 5, v18
    v_lshl_add_u32 v18, v19, 3, v18        ; chunk w
    v_cmp_gt_u32 vcc, {NCH}, v18
    v_mul_u32_u24 v18, {CHUNK}, v18
    v_and_b32 v19, 3, v127
    v_add_u32 v19, {sJ}, v19               ; j0
    s_add_u32 {sT}, {sJ}, {sQuota}
    s_waitcnt vmcnt(0) lgkmcnt(0)
    s_barrier
    v_cndmask_b32 v17, 0, v17, vcc
    v_and_b32 v21, 0xffff, v17
    v_lshrrev_b32 v17, 16, v17             ; cnt
    v_add3_u32 v18, v18, v21, v19
    v_min_u32 v21, {sT}, v17
    v_sub_u32 v21, v21, v19
    v_lshlrev_b32 v19, 4, v18""")
    for i in range(8):
        A(f"    v_cmp_lt_i32 s[{MASK+2*i}:{MASK+2*i+1}], {4*i}, v21")
    A(f"    v_cmp_lt_u32 vcc, 32, v17")
    for i in range(8):
        A(f"    s_or_b64 exec, s[{MASK+2*i}:{MASK+2*i+1}], 1")
        A(f"    global_load_ubyte v{ST+i}, v18, {sBYT} offset:{4*i}")
    for i in range(8):
        A(f"    s_or_b64 exec, s[{MASK+2*i}:{MASK+2*i+1}], 1")
        A(f"    global_load_dwordx4 v[{RAW+4*i}:{RAW+4*i+3}], v19, {sWS} offset:{64*i}")
    A(f"""    s_mov_b64 exec, -1
    v_mov_b32 v22, {MAXW}
    v_mov_b32 v23, 1
    s_mov_b32 {sT}, {CNTL}
    s_mov_b64 exec, vcc
    ds_max_u32 v22, v17
    s_waitcnt vmcnt(8)""")
    for i in range(8):
        A(f"    s_mov_b64 exec, s[{MASK+2*i}:{MASK+2*i+1}]")
        A(f"    v_lshl_add_u32 v{ST+i}, v{ST+i}, 2, {sT}")
        A(f"    ds_add_rtn_u32 v{ACC+i}, v{ST+i}, v23")
    A(f"""    s_mov_b64 exec, -1
    s_waitcnt lgkmcnt(0)
    s_barrier
    ds_read_b32 v16, v20
    ds_read_b32 v17, v22
    s_waitcnt lgkmcnt(0)
    v_add_u32 {vPc}, 7, v16
    v_and_b32 {vPc}, -8, {vPc}
    v_readfirstlane_b32 {sMax}, v17
    v_mov_b32 {vBase}, {vPc}""")
    dpp_scan(vBase)
    A(f"""    s_nop 0
    v_readlane_b32 {sT}, {vBase}, 63
    v_sub_u32 {vBase}, {vBase}, {vPc}
    s_max_u32 {sMax}, {sMax}, 32
    s_cmp_lg_u32 {sQuota}, 32
    s_cbranch_scc1 K2_FITS
    s_cmp_gt_u32 {sMax}, 32
    s_cbranch_scc1 K2_NOFIT
    s_cmp_le_u32 {sT}, {CAP}
    s_cbranch_scc1 K2_FITS
K2_NOFIT:
    s_mov_b32 {sQuota}, 12
    s_waitcnt vmcnt(0)
    s_barrier
    s_branch K2_ROUND
K2_FITS:""")
    for i in range(8):
        A(f"    ds_bpermute_b32 v{ST+i}, v{ST+i}, {vBase}")
    A(f"""    s_mov_b32 {sT}, {RECL}
    v_add_u32 v17, {sWave}, v16
    v_cmp_lt_u32 vcc, v17, {vPc}
    v_add_u32 v17, v17, {vBase}
    v_lshl_add_u32 v17, v17, 4, {sT}
    v_mov_b32 v20, 0
    v_mov_b32 v21, 0
    v_mov_b32 v22, 0
    v_mov_b32 v23, 0x3fff0000
    s_mov_b64 exec, vcc
    ds_write_b128 v17, v[20:23]
    s_mov_b64 exec, -1
    s_waitcnt lgkmcnt(0)""")
    for i in range(8):
        A(f"    v_add_u32 v{ST+i}, v{ST+i}, v{ACC+i}")
        A(f"    v_lshl_add_u32 v{ST+i}, v{ST+i}, 4, {sT}")
    for i in range(8):
        A(f"    s_mov_b64 exec, s[{MASK+2*i}:{MASK+2*i+1}]")
        A(f"    s_waitcnt vmcnt({7-i})")
        A(f"    ds_write_b128 v{ST+i}, v[{RAW+4*i}:{RAW+4*i+3}]")
    A(f"""    s_mov_b64 exec, -1
    s_mov_b32 {sItem}, {sWave}
    s_mov_b32 {sH}, -1
    s_waitcnt lgkmcnt(0)
    s_barrier
K2_ITEM:
    s_cmp_ge_u32 {sItem}, {sNN2}
    s_cbranch_scc1 K2_DONE
    v_mov_b32 {vA}, {QW}
    v_mov_b32 {vY}, 1
    s_mov_b64 exec, 1
    ds_add_rtn_u32 {vItem}, {vA}, {vY}
    s_mov_b64 exec, -1
    s_cmp_ge_u32 {sItem}, {sNN}
    s_cselect_b32 {sT}, 1, 0
    s_cselect_b32 {sT2}, {sNN}, 0
    s_sub_u32 {sNode}, {sItem}, {sT2}
    s_cmp_eq_u32 {sT}, {sH}
    s_cbranch_scc1 K2_SAMEH
    s_mov_b32 {sH}, {sT}
    v_mbcnt_lo_u32_b32 {vS}, -1, 0
    v_mbcnt_hi_u32_b32 {vS}, -1, {vS}
    s_lshl_b32 {sT}, {sH}, 8
    v_and_b32 {vCol}, 15, {vS}
    v_lshl_add_u32 {vCol}, {vCol}, 4, {sT}
    s_lshl_b32 {sT}, {sH}, 13
    s_add_u32 {sT}, {sT}, {WZ_OFF}
    v_lshl_add_u32 {vS}, {vS}, 4, {sT}
    v_add_u32 v{BT}, 4096, {vS}""")
    for t in range(8):
        r = vS if t < 4 else f"v{BT}"
        A(f"    global_load_dwordx4 v[{WW+4*t}:{WW+4*t+3}], {r}, {sWS} offset:{1024*(t&3)}")
    A(f"""K2_SAMEH:
    v_readlane_b32 {sP16}, {vBase}, {sNode}
    v_readlane_b32 {sRem}, {vPc}, {sNode}
    s_nop 0
    s_lshl_b32 {sP16}, {sP16}, 4
    s_cmp_eq_u32 {sRem}, 0
    s_cbranch_scc1 K2_EMPTY
    s_and_b32 {sT}, {sRem}, 31
    s_cmp_eq_u32 {sT}, 8
    s_cbranch_scc1 K2_F1
    s_cmp_eq_u32 {sT}, 16
    s_cbranch_scc1 K2_F2
    s_cmp_eq_u32 {sT}, 24
    s_cbranch_scc1 K2_F3""")
    for nq in (4, 1, 2, 3):
        A(f"K2_F{nq}:")
        kstep(nq, True)
        A(f"    s_add_u32 {sP16}, {sP16}, {nq*128}")
        A(f"    s_sub_u32 {sRem}, {sRem}, {nq*8}")
        A(f"    s_cmp_eq_u32 {sRem}, 0")
        A(f"    s_cbranch_scc1 K2_EPI")
        if nq != 3:
            A(f"    s_branch K2_LOOP")
    A("K2_LOOP:")
    kstep(4, False)
    A(f"""    s_add_u32 {sP16}, {sP16}, 512
    s_sub_u32 {sRem}, {sRem}, 32
    s_cmp_eq_u32 {sRem}, 0
    s_cbranch_scc0 K2_LOOP
K2_EPI:
    s_mul_i32 {sT}, {sNode}, {ZS}
    s_lshl_b32 {sT2}, {sH}, 8
    s_add_u32 {sT}, {sT}, {sT2}
    v_add_u32 {vA}, {sT}, {vZw}""")
    for r in range(4):
        for t in range(8):
            op = "v_mul_f32" if r == 0 else "v_fmac_f32"
            A(f"    {op} v{BT+t}, v{WW+4*t+r}, v{ACC+4*t+r}")
    A(f"""    s_cmp_eq_u32 {sRound}, 0
    s_cbranch_scc1 K2_NOACC
    ds_read_b128 v[{ST}:{ST+3}], {vA}
    s_waitcnt lgkmcnt(0)""")
    for q in range(4):
        A(f"    v_lshlrev_b32 v{ST+4}, 16, v{ST+q}")
        A(f"    v_and_b32 v{ST+5}, 0xffff0000, v{ST+q}")
        A(f"    v_add_f32 v{BT+2*q}, v{BT+2*q}, v{ST+4}")
        A(f"    v_add_f32 v{BT+2*q+1}, v{BT+2*q+1}, v{ST+5}")
    A("K2_NOACC:")
    for q in range(4):
        A(f"    v_cvt_pk_bf16_f32 v{AF+q}, v{BT+2*q}, v{BT+2*q+1}")
    A(f"""    ds_write_b128 {vA}, v[{AF}:{AF+3}]
    v_readfirstlane_b32 {sItem}, {vItem}
    s_branch K2_ITEM
K2_EMPTY:
    s_waitcnt lgkmcnt(0)
    v_readfirstlane_b32 {sItem}, {vItem}
    s_cmp_eq_u32 {sRound}, 0
    s_cbranch_scc0 K2_ITEM
    s_mul_i32 {sT}, {sNode}, {ZS}
    s_lshl_b32 {sT2}, {sH}, 8
    s_add_u32 {sT}, {sT}, {sT2}
    v_add_u32 {vA}, {sT}, {vZw}
    v_mov_b32 v{AF}, 0
    v_mov_b32 v{AF+1}, 0
    v_mov_b32 v{AF+2}, 0
    v_mov_b32 v{AF+3}, 0
    ds_write_b128 {vA}, v[{AF}:{AF+3}]
    s_branch K2_ITEM
K2_DONE:
    s_add_u32 {sJ}, {sJ}, {sQuota}
    s_add_u32 {sRound}, {sRound}, 1
    s_cmp_lt_u32 {sJ}, {sMax}
    s_cbranch_scc0 K2_FINAL
    s_waitcnt vmcnt(0) lgkmcnt(0)
    s_barrier
    s_branch K2_ROUND
K2_FINAL:
    v_mbcnt_lo_u32_b32 v0, -1, 0
    v_mbcnt_hi_u32_b32 v0, -1, v0          ; lane
    s_and_b32 {sT}, {sWave}, 3
    s_lshr_b32 {sNode}, {sWave}, 2
    s_lshl_b32 {sNode}, {sNode}, 4
    s_lshl_b32 {sT2}, {sT}, 10
    s_add_u32 {sT2}, {sT2}, {WF_OFF}
    s_waitcnt vmcnt(0)
    v_lshl_add_u32 v1, v0, 4, {sT2}""")
    WFR = 64
    for bs in range(10):
        A(f"    global_load_dwordx4 v[{WFR+4*bs}:{WFR+4*bs+3}], v1, {sWS}")
        if bs < 9:
            A(f"    v_add_u32 v1, 4096, v1")
    A(f"""    v_and_b32 v2, 15, v0
    v_add_u32 v2, {sNode}, v2
    v_lshrrev_b32 v3, 4, v0                ; g
    v_mul_u32_u24 v4, {ZS}, v2
    v_lshl_add_u32 v4, v3, 4, v4
    v_add_u32 v5, {sN0}, v2
    v_lshlrev_b32 v5, 9, v5
    v_lshl_add_u32 v5, v3, 3, v5
    s_lshl_b32 {sT}, {sT}, 5
    v_add_u32 v5, {sT}, v5
    s_waitcnt lgkmcnt(0)
    s_barrier
    s_cmp_ge_u32 {sNode}, {sNN}
    s_cbranch_scc1 K2_END""")
    terms = [(0, 0, 0), (1, 4, 2), (2, 8, 2), (3, 12, 2),
             (0, 5, 1), (1, 1, 3), (2, 2, 3), (3, 3, 3),
             (0, 10, 1), (1, 11, 4), (2, 13, 4), (3, 6, 4),
             (0, 15, 1), (1, 14, 4), (2, 7, 4), (3, 9, 4)]
    seq = []
    for s in range(2):
        for tm in terms:
            seq.append((tm[0], tm[1], tm[2], s))
    OUT = 104
    ZR = 8
    NBUF = 12
    started = set()
    def zread(k):
        c, jk, blk, s = seq[k]
        r = ZR + 4 * (k % NBUF)
        A(f"    ds_read_b128 v[{r}:{r+3}], v4 offset:{jk*128+s*64}")
    for k in range(NBUF):
        zread(k)
    A("    s_waitcnt vmcnt(0)")
    for k in range(32):
        c, jk, blk, s = seq[k]
        issued = min(32, k + NBUF)
        A(f"    s_waitcnt lgkmcnt({issued-k-1})")
        r = ZR + 4 * (k % NBUF)
        w = WFR + 4 * (blk * 2 + s)
        cc = f"v[{OUT+4*c}:{OUT+4*c+3}]" if c in started else "0"
        started.add(c)
        A(f"    v_mfma_f32_16x16x32_bf16 v[{OUT+4*c}:{OUT+4*c+3}], v[{w}:{w+3}], v[{r}:{r+3}], {cc}")
        if k + NBUF < 32:
            zread(k + NBUF)
    A(f"""    v_cmp_gt_u32 vcc, {sNN}, v2
    s_mov_b32 {sT}, 0xbfb8aa3b
    s_nop 7""")
    for r in range(4):
        A(f"    v_mul_f32 v{8+r}, {sT}, v{OUT+r}")
    for r in range(4):
        A(f"    v_exp_f32 v{8+r}, v{8+r}")
    A("    s_nop 0")
    for r in range(4):
        A(f"    v_add_f32 v{8+r}, 1.0, v{8+r}")
    for r in range(4):
        A(f"    v_rcp_f32 v{8+r}, v{8+r}")
    A("    s_and_b64 exec, exec, vcc")
    A(f"    v_cvt_pk_bf16_f32 v12, v{OUT}, v{OUT+1}")
    A(f"    v_cvt_pk_bf16_f32 v13, v{OUT+2}, v{OUT+3}")
    A(f"    global_store_dwordx2 v5, v[12:13], s[6:7]")
    for c in range(1, 4):
        for r in range(4):
            A(f"    v_mul_f32 v{OUT+4*c+r}, v{OUT+4*c+r}, v{8+r}")
        A(f"    v_cvt_pk_bf16_f32 v{12+2*c}, v{OUT+4*c}, v{OUT+4*c+1}")
        A(f"    v_cvt_pk_bf16_f32 v{13+2*c}, v{OUT+4*c+2}, v{OUT+4*c+3}")
        A(f"    global_store_dwordx2 v5, v[{12+2*c}:{13+2*c}], s[6:7] offset:{128*c}")
    A("""K2_END:
    s_endpgm""")

def kd(name, vgpr, sgpr):
    A(".p2align 6")
    A(f""".amdhsa_kernel {name}
  .amdhsa_next_free_vgpr {vgpr}
  .amdhsa_next_free_sgpr {sgpr}
  .amdhsa_accum_offset {(vgpr+3)//4*4}
  .amdhsa_group_segment_fixed_size 0
  .amdhsa_kernarg_size 96
  .amdhsa_user_sgpr_count 2
  .amdhsa_user_sgpr_kernarg_segment_ptr 1
  .amdhsa_system_sgpr_workgroup_id_x 1
  .amdhsa_float_denorm_mode_32 3
.end_amdhsa_kernel""")

A(HEADER)
A(f"; @launch kernel=bin_kernel grid=(256,1,1) block=(832,1,1) lds={K1_LDS}")
A(f"; @launch kernel=agg_kernel grid=(256,1,1) block=(1024,1,1) lds={K2_LDS}")
A('.amdgcn_target "amdgcn-amd-amdhsa--gfx950"')
A(".text")
A(".globl bin_kernel")
A(".globl agg_kernel")
gen_k1()
gen_k2()
A('.section .rodata,"a"')
kd("bin_kernel", 64, 32)
kd("agg_kernel", 128, 56)
out = sys.argv[1] if len(sys.argv) > 1 else "standalone__tensor_product_equiv_equiformer__graph.s"
open(out, "w").write("\n".join(L) + "\n")
print("wrote", out, len(L), "lines")
```

```python
import sys

N = 12500; E = 800000; CHUNK = 3200; NCH = 250; NB = 256; NPB = 49
REC_OFF = 0
BYT_OFF = 256 * CHUNK * 16
TAB_OFF = BYT_OFF + 256 * CHUNK + 8192

L = []
def A(s=""):
    for ln in s.split("\n"):
        t = ln.strip()
        if t.startswith(";@STAMPOUT"):
            _, k, ws, wv = t.split()
            stamp_out(int(k), ws, wv)
        elif t.startswith(";@STAMP"):
            stamp(int(t.split()[1]))
        else:
            L.append(ln)

HEADER = """; Kernarg layout for this problem (96 bytes, ptrs only, base s[0:1]):
; destination node, aggregates with MFMA, applies the radial weights, the two linear maps and the gate."""

import os
STAMPS = os.environ.get("STAMPS") == "1"
STAMP_OFF = 32 << 20
def opt(name, dflt):
    return os.environ.get(name, dflt)
NT = opt("NT", "nt"); SC = opt("SC", "sc1"); PF = int(opt("PF", "1")); RPOL = opt("RPOL", "")
def stamp(i):
    if STAMPS:
        A(f"""    s_waitcnt lgkmcnt(0)
    s_memrealtime s[62:63]
    s_waitcnt lgkmcnt(0)
    s_mov_b32 s{64+i}, s62""")
def stamp_out(kidx, ws, wavereg):
    if STAMPS:
        A(f"""    s_mov_b64 exec, 1
    s_lshl_b32 s62, s2, 4
    s_add_u32 s62, s62, {wavereg}
    s_lshl_b32 s62, s62, 6
    s_add_u32 s62, s62, {STAMP_OFF + kidx*(1<<20)}
    v_mov_b32 v60, s62""")
        for i in range(12):
            A(f"    v_mov_b32 v61, s{64+i}")
            A(f"    global_store_dword v60, v61, {ws} offset:{4*i}")

def dpp_scan(v):
    for sh in (1, 2, 4, 8):
        A("    s_nop 1")
        A(f"    v_add_u32_dpp {v}, {v}, {v} row_shr:{sh} row_mask:0xf bank_mask:0xf")
    A("    s_nop 1")
    A(f"    v_add_u32_dpp {v}, {v}, {v} row_bcast:15 row_mask:0xa bank_mask:0xf")
    A("    s_nop 1")
    A(f"    v_add_u32_dpp {v}, {v}, {v} row_bcast:31 row_mask:0xc bank_mask:0xf")

K1_STG = 0; K1_BYT = 51200; K1_CNT = 54400; K1_BASE = 55424; K1_LDS = 56448
K1_THR = 1024 if PF else 832

def gen_k1():
    A(".p2align 8")
    A(".type bin_kernel,@function")
    A("bin_kernel:")
    A(f"""    s_cmp_ge_u32 s2, 256
    s_cbranch_scc1 K1_END
    s_load_dwordx4 s[4:7], s[0:1], 8
    s_load_dwordx4 s[8:11], s[0:1], 24
    s_load_dwordx2 s[18:19], s[0:1], 88    ; ws
    v_readfirstlane_b32 s23, v0""")
    if PF:
        A("""    s_cmp_ge_u32 s23, 832
    s_cbranch_scc1 K1_PF""")
    A(f"""    s_cmp_ge_u32 s2, {NCH}
    s_cbranch_scc1 K1_END
    ;@STAMP 0
    s_mul_i32 s3, s2, {CHUNK//4}
    v_add_u32 v1, s3, v0
    v_lshlrev_b32 v2, 4, v1
    v_lshlrev_b32 v3, 5, v1
    v_mul_u32_u24 v28, 24, v1
    v_and_b32 v29, 255, v0
    v_lshlrev_b32 v29, 2, v29
    v_mov_b32 v30, 0
    ds_write_b32 v29, v30 offset:{K1_CNT}
    v_cmp_gt_u32 vcc, {CHUNK//4}, v0
    s_mov_b64 s[20:21], vcc
    s_mov_b64 exec, vcc
    s_waitcnt lgkmcnt(0)
    global_load_dwordx4 v[4:7], v2, s[10:11] {NT}           ; dst
    s_barrier
    global_load_dwordx4 v[8:11], v2, s[8:9] {NT}            ; src
    global_load_dwordx4 v[12:15], v3, s[6:7] {NT}           ; e_attr
    global_load_dwordx4 v[16:19], v3, s[6:7] offset:16 {NT}
    global_load_dwordx3 v[20:22], v28, s[4:5] {NT}          ; rhat
    global_load_dwordx3 v[24:26], v28, s[4:5] offset:12 {NT}
    v_mov_b32 v30, 1
    s_movk_i32 s22, -{NPB}
    s_and_b32 s24, s2, 7
    s_lshl_b32 s24, s24, 5
    s_lshr_b32 s25, s2, 3
    s_add_u32 s26, s24, s25
    s_waitcnt vmcnt(5)
    ;@STAMP 1""")
    for i in range(4):
        A(f"    v_mul_u32_u24 v{32+i}, 21400, v{4+i}")
    for i in range(4):
        A(f"    v_lshrrev_b32 v{32+i}, 20, v{32+i}          ; bucket")
    for i in range(4):
        A(f"    v_mad_i32_i24 v{4+i}, v{32+i}, s22, v{4+i}")
    for i in range(4):
        A(f"    v_lshlrev_b32 v{32+i}, 2, v{32+i}")
        A(f"    ds_add_rtn_u32 v{36+i}, v{32+i}, v30 offset:{K1_CNT}")
    A(f"""    s_mov_b64 exec, -1
    v_and_b32 v1, 63, v0
    v_lshlrev_b32 v2, 4, v1
    s_waitcnt lgkmcnt(0)
    s_barrier
    ;@STAMP 2
    ds_read_b128 v[40:43], v2 offset:{K1_CNT}
    s_waitcnt lgkmcnt(0)
    v_add_u32 v45, v40, v41
    v_add_u32 v46, v45, v42
    v_add_u32 v47, v46, v43
    v_mov_b32 v48, v47""")
    dpp_scan("v48")
    A(f"""    v_sub_u32 v52, v48, v47
    v_add_u32 v53, v52, v40
    v_add_u32 v54, v52, v45
    v_add_u32 v55, v52, v46
    ds_write_b128 v2, v[52:55] offset:{K1_BASE}
    s_mov_b64 exec, s[20:21]
    s_waitcnt lgkmcnt(0)""")
    for i in range(4):
        A(f"    ds_read_b32 v{32+i}, v{32+i} offset:{K1_BASE}")
    A(f"""    s_cmp_lt_u32 s23, 768
    s_cbranch_scc1 K1_NOTAB
    s_mov_b64 exec, -1
    s_lshl_b32 s24, s26, 2
    s_add_u32 s24, s24, {TAB_OFF}
    v_lshlrev_b32 v44, 12, v1
    v_add_u32 v44, s24, v44""")
    for i in range(4):
        A(f"    v_lshl_or_b32 v{56+i}, v{40+i}, 16, v{52+i}")
        A(f"    global_store_dword v44, v{56+i}, s[18:19] offset:{1024*i}")
    A(f"""    s_mov_b64 exec, s[20:21]
    s_waitcnt vmcnt(4)
    s_branch K1_TABDONE
K1_NOTAB:
    s_waitcnt vmcnt(0)
K1_TABDONE:
    ;@STAMP 3
    s_mov_b32 s24, 0x05040100
    v_alignbit_b32 v28, v22, v21, 16
    v_alignbit_b32 v29, v9, v22, 16
    v_perm_b32 v21, v8, v21, s24
    v_alignbit_b32 v30, v26, v25, 16
    v_alignbit_b32 v31, v11, v26, 16
    v_perm_b32 v25, v10, v25, s24
    s_waitcnt lgkmcnt(0)""")
    ypair = [20, 28, 24, 30]
    for i in range(4):
        A(f"    v_add_u32 v{32+i}, v{32+i}, v{36+i}")
        A(f"    v_lshlrev_b32 v{36+i}, 4, v{32+i}")
        A(f"    ds_write2_b64 v{36+i}, v[{12+2*i}:{13+2*i}], v[{ypair[i]}:{ypair[i]+1}] offset0:0 offset1:1")
        A(f"    ds_write_b8 v{32+i}, v{4+i} offset:{K1_BYT}")
    A(f"""    v_lshlrev_b32 v2, 4, v0
    s_mul_i32 s24, s26, {CHUNK*16}
    s_mul_i32 s25, s26, {CHUNK}
    s_add_u32 s25, s25, {BYT_OFF}
    v_add_u32 v3, s24, v2
    v_add_u32 v4, {1*12800}, v3
    v_add_u32 v5, {2*12800}, v3
    v_add_u32 v6, {3*12800}, v3
    v_add_u32 v7, s25, v2
    s_waitcnt lgkmcnt(0)
    s_barrier
    ;@STAMP 4""")
    for i in range(4):
        A(f"    ds_read_b128 v[{8+4*i}:{11+4*i}], v2 offset:{12800*i}")
    for i in range(4):
        A(f"    s_waitcnt lgkmcnt({3-i})")
        A(f"    global_store_dwordx4 v{3+i}, v[{8+4*i}:{11+4*i}], s[18:19] {SC}")
    A(f"""    v_cmp_gt_u32 vcc, {CHUNK//16}, v0
    s_and_b64 exec, exec, vcc
    s_cbranch_execz K1_NOBYT
    ds_read_b128 v[24:27], v2 offset:{K1_BYT}
    s_waitcnt lgkmcnt(0)
    global_store_dwordx4 v7, v[24:27], s[18:19] {SC}
K1_NOBYT:""")
    if PF == 5: A("    s_barrier")
    if STAMPS:
        A("""    ;@STAMP 5
    s_waitcnt vmcnt(0)
    ;@STAMP 6
    s_lshr_b32 s23, s23, 6
    ;@STAMPOUT 0 s[18:19] s23""")
    A("    s_endpgm")
    if PF:
        A(f"""K1_PF:
    s_load_dwordx2 s[12:13], s[0:1], 0     ; x
    s_mov_b32 s14, {N*512}
    s_mov_b32 s15, 0x00020000
    v_subrev_u32 v1, 832, v0               ; 0..191
    v_lshrrev_b32 v2, 1, v1
    v_and_b32 v1, 1, v1
    v_lshlrev_b32 v1, 7, v1
    v_lshl_add_u32 v1, v2, 9, v1
    s_lshr_b32 s3, s2, 3
    s_mul_i32 s3, s3, {391*512}
    s_mul_i32 s16, s2, {49*512}
    s_add_u32 s16, s16, 256
    v_add_u32 v3, s3, v1
    v_cmp_gt_u32 vcc, {NPB}, v2
    v_add_u32 v8, s16, v1
    v_mov_b32 v9, 0x7fffff00
    v_cndmask_b32 v8, v9, v8, vcc
    v_cmp_gt_u32 vcc, {391-4*96}, v2""")
        for i in range(1, 5):
            A(f"    v_add_u32 v{3+i}, {96*512*i}, v3")
        A("""    v_cndmask_b32 v7, v9, v7, vcc
    s_waitcnt lgkmcnt(0)""")
        if PF >= 3:
            A(f"""    v_subrev_u32 v1, 832, v0
    s_mul_i32 s16, s2, {49*512}
    v_cmp_gt_u32 vcc, 4, v1
    v_lshl_add_u32 v3, v1, 7, s16
    v_add_u32 v4, {192*128}, v3
    v_cndmask_b32 v4, v9, v4, vcc""")
        nb = {1: 2, 2: 1, 3: 2, 4: 1, 5: 3}[PF]
        for i in range(nb): A("    s_barrier")
        if PF == 5: A("    s_barrier")
        for i in range(6 if PF < 3 else 2):
            A(f"    buffer_load_dword v{10+i}, v{3+i}, s[12:15], 0 offen")
        for i in range(2 - nb): A("    s_barrier")
        if PF != 5: A("    s_barrier")
        A("    s_waitcnt vmcnt(0)")
        if STAMPS:
            A("""    ;@STAMP 0
    ;@STAMP 1
    ;@STAMP 2
    ;@STAMP 3
    ;@STAMP 4
    ;@STAMP 5
    ;@STAMP 6
    s_lshr_b32 s23, s23, 6
    ;@STAMPOUT 0 s[18:19] s23""")
    A("""K1_END:
    s_endpgm""")

ZS = 2048
ZEND = NPB * ZS
WZL = ZEND
CNTL = WZL + 6144
assert CNTL % 256 == 0
QW = CNTL + 256
RECL = QW + 16
K2_LDS = 163840
RND = (K2_LDS - RECL) // 16 - NPB * 3
SCR = RECL
WST = 0
RADL = 40960

vA, vY, vS, vCol, vZw, vWz, vBP, vItem = [f"v{i}" for i in range(8)]
TM = 8; AF = 12; BT = 16; WW = 24; RAW = 64; ACC = 96
sX = "s[8:11]"
sWS = "s[12:13]"
sN0 = "s14"; sNN = "s15"; sWave = "s16"; sF0 = "s17"; sTot = "s18"; sPos = "s19"; sDelta = "s20"
sItem = "s21"; sH = "s22"; sNode = "s23"; sBP = "s24"; sRem = "s25"; sSelLo = "s26"; sSelHi = "s27"
sT = "s28"; sT2 = "s29"; sNN2 = "s30"; sSoff = "s31"; sB = "s3"; sR0 = "s50"; sLim = "s51"; sAm = "s52"
MASK = 32
sJM = "s[40:41]"
sBYT = "s[42:43]"
sRAD = "s[44:45]"; sW0 = "s[46:47]"; sW1 = "s[48:49]"
BLK = [0, 5, 6, 7, 2, 1, 10, 9, 3, 10, 1, 8, 4, 9, 8, 1]
VAR = [0, 3, 3, 3, 2, 1, 4, 5, 2, 5, 1, 4, 2, 4, 5, 1]
def lut(tab, h):
    v = 0
    for j in range(4):
        for b in range(2):
            v |= tab[4*j + 2*h + b] << (4 * (2*j + b))
    return v

def kstep(nq, first):
    n = 2 * nq
    YR = [AF, AF+1, AF+2, AF+3, TM, TM+1, TM+2, TM+3]
    sreg = lambda i: (TM if (first and i == 0) else RAW + 4 * i)
    A(f"    v_add_u32 {vS}, {sDelta}, {vS}")
    A(f"    v_add_u32 {vA}, {sDelta}, {vA}")
    for i in range(n):
        A(f"    ds_read_u16 v{sreg(i)}, {vS} offset:{64*i}")
    na = min(n, 6)
    for i in range(na):
        A(f"    ds_read_u16_d16_hi v{BT+i}, {vA} offset:{64*i}")
    A(f"    v_add_u32 {vY}, {sDelta}, {vY}")
    if first:
        A(f"    v_mov_b64 v[{RAW}:{RAW+1}], 0")
        A(f"    v_mov_b64 v[{RAW+2}:{RAW+3}], 0")
        A(f"    s_cmp_eq_u32 {sAm}, 0")
    for i in range(n):
        if i % 2 == 0:
            A(f"    s_waitcnt lgkmcnt({n-2-i+na})")
        if first and i == 0:
            A(f"    s_cbranch_scc1 K2_SK{nq}")
        A(f"    v_lshl_add_u32 v{sreg(i)}, v{sreg(i)}, 9, {vCol}")
        A(f"    buffer_load_dwordx4 v[{RAW+4*i}:{RAW+4*i+3}], v{sreg(i)}, {sX}, {sSoff} offen")
        if first and i == 0:
            A(f"K2_SK{nq}:")
    for i in range(na, n):
        A(f"    ds_read_u16_d16_hi v{BT+i}, {vA} offset:{64*i}")
    A(f"    s_mov_b64 exec, {sJM}")
    for i in range(n):
        A(f"    ds_read_u16_d16_hi v{YR[i]}, {vY} offset:{64*i}")
    A("    s_waitcnt lgkmcnt(0)")
    for i in range(n):
        A(f"    v_mul_f32 v{BT+i}, v{BT+i}, v{YR[i]}")
    A(f"    s_mov_b64 exec, -1")
    if first:
        A(f"    v_and_b32 v{BT}, {sAm}, v{BT}")
    for q in range(nq):
        A(f"    v_cvt_pk_bf16_f32 v{AF+q}, v{BT+2*q}, v{BT+2*q+1}")
    q = nq
    while q < 4:
        if q % 2 == 0:
            for b in (AF, BT, BT+4):
                A(f"    v_mov_b64 v[{b+q}:{b+q+1}], 0")
            q += 2
        else:
            for b in (AF, BT, BT+4):
                A(f"    v_mov_b32 v{b+q}, 0")
            q += 1
    A("    s_waitcnt vmcnt(0)")
    def perms(t):
        b = BT + 4 * (t & 1)
        sel = sSelHi if (t & 1) else sSelLo
        for q in range(nq):
            A(f"    v_perm_b32 v{b+q}, v{RAW+4*(2*q+1)+(t>>1)}, v{RAW+4*(2*q)+(t>>1)}, {sel}")
    def mfma(t):
        b = BT + 4 * (t & 1)
        c = "0" if first else f"v[{ACC+4*t}:{ACC+4*t+3}]"
        A(f"    v_mfma_f32_16x16x32_bf16 v[{ACC+4*t}:{ACC+4*t+3}], v[{AF}:{AF+3}], v[{b}:{b+3}], {c}")
    perms(0)
    for t in range(8):
        if t < 7:
            perms(t + 1)
            if nq == 1 and t == 0:
                A("    s_nop 0")
        else:
            A("    s_nop 0")
        mfma(t)

def gen_k2():
    A(".p2align 8")
    A(".type agg_kernel,@function")
    A("agg_kernel:")
    P = 96
    vL = "v126"; vZero = 120
    A(f"""    s_cmp_ge_u32 s2, 256
    s_cbranch_scc1 K2_END
    s_load_dwordx2 {sWS}, s[0:1], 88       ; ws
    s_load_dwordx4 s[44:47], s[0:1], 40
    s_load_dwordx2 {sW1}, s[0:1], 56       ; w_si1
    s_load_dwordx2 s[8:9], s[0:1], 0       ; x
    s_load_dwordx2 s[6:7], s[0:1], 72      ; out
    ;@STAMP 0
    s_and_b32 {sB}, s2, 7
    s_lshl_b32 {sB}, {sB}, 5
    s_lshr_b32 {sT}, s2, 3
    s_add_u32 {sB}, {sB}, {sT}             ; bucket
    v_lshrrev_b32 v1, 6, v0
    v_and_b32 {vL}, 63, v0                 ; lane
    v_readfirstlane_b32 {sWave}, v1
    s_mul_i32 {sN0}, {sB}, {NPB}
    s_sub_u32 {sNN}, {N}, {sN0}
    s_min_u32 {sNN}, {sNN}, {NPB}
    s_lshl_b32 {sNN2}, {sNN}, 1
    s_mov_b32 s10, {N*512}
    s_mov_b32 s11, 0x00020000
    s_mov_b32 {sSelLo}, 0x05040100
    s_mov_b32 {sSelHi}, 0x07060302
    s_mov_b32 s40, 0xfff0fff0
    s_mov_b32 s41, 0xfff0fff0
    s_lshl_b32 {sF0}, {sWave}, 8
    s_lshl_b32 {sB}, {sB}, 10
    s_add_u32 {sB}, {sB}, {TAB_OFF}
    v_bfe_u32 v2, v0, 4, 1
    v_bfe_u32 v3, v0, 6, 1
    v_lshl_or_b32 v2, v3, 1, v2
    v_lshlrev_b32 v2, 1, v2
    v_xor_b32 v2, v2, v0
    v_lshlrev_b32 v2, 4, v2
    v_lshl_add_u32 v4, {vL}, 4, {sB}
    s_lshl_b32 {sT}, {sWave}, 10
    s_mov_b32 {sR0}, 0
    s_mov_b32 m0, {sT}
    s_waitcnt lgkmcnt(0)
    global_load_dwordx4 v[{P}:{P+3}], v4, {sWS}
    global_load_lds_dwordx4 v2, {sW0}
    s_add_u32 m0, {sT}, 16384
    s_cmp_lt_u32 {sWave}, 8
    global_load_lds_dwordx4 v2, {sW1}
    s_cbranch_scc0 K2_RAD
    s_add_u32 m0, {sT}, 32768
    v_add_u32 v2, 16384, v2
    global_load_lds_dwordx4 v2, {sW1}
    s_branch K2_DMADONE
K2_RAD:
    s_mul_i32 {sT}, {sWave}, 320
    s_add_u32 m0, {sT}, {RADL - 8*320}
    s_sub_u32 {sT}, {sT}, {8*320}
    v_lshl_add_u32 v2, {vL}, 4, {sT}
    s_mov_b64 exec, 0xfffff
    global_load_lds_dwordx4 v2, {sRAD}
    s_mov_b64 exec, -1
K2_DMADONE:
    v_mov_b64 v[{vZero}:{vZero+1}], 0
    v_mov_b64 v[{vZero+2}:{vZero+3}], 0
    v_lshlrev_b32 v2, 4, v0
    s_add_u32 s42, s12, {BYT_OFF}
    s_addc_u32 s43, s13, 0
    v_add_u32 v3, {SCR}, v2
    ds_write_b128 v3, v[{vZero}:{vZero+3}]           ; marks
    v_lshlrev_b32 v3, 2, {vL}
    v_add_u32 v3, {CNTL}, v3
    ds_write_b32 v3, v{vZero}
    s_waitcnt vmcnt(3)
    s_branch K2_HAVETAB
K2_ROUND:
    v_mbcnt_lo_u32_b32 {vL}, -1, 0
    v_mbcnt_hi_u32_b32 {vL}, -1, {vL}      ; lane
    v_mov_b64 v[{vZero}:{vZero+1}], 0
    v_mov_b64 v[{vZero+2}:{vZero+3}], 0
    v_lshl_add_u32 v4, {vL}, 4, {sB}
    global_load_dwordx4 v[{P}:{P+3}], v4, {sWS}
    s_lshl_b32 {sT}, {sWave}, 10
    s_add_u32 {sT}, {sT}, {SCR}
    v_lshl_add_u32 v3, {vL}, 4, {sT}
    ds_write_b128 v3, v[{vZero}:{vZero+3}]
    v_lshlrev_b32 v3, 2, {vL}
    v_add_u32 v3, {CNTL}, v3
    ds_write_b32 v3, v{vZero}
    s_waitcnt vmcnt(0)
K2_HAVETAB:
    ;@STAMP 1
    s_mov_b32 vcc_lo, 0x80800000
    s_mov_b32 vcc_hi, 0x80808080
    v_mul_u32_u24 v{P+12}, {4*CHUNK}, {vL}
    v_cndmask_b32 v{P+3}, v{P+3}, v{vZero}, vcc""")
    for i in range(4):
        A(f"    v_lshrrev_b32 v{P+4+i}, 16, v{P+i}           ; count")
    A(f"""    v_add_u32 v{P+5}, v{P+5}, v{P+4}
    v_add_u32 v{P+6}, v{P+6}, v{P+5}
    v_add_u32 v{P+7}, v{P+7}, v{P+6}
    v_mov_b32 v{P+8}, v{P+7}""")
    fill = [f"    v_and_b32 v{P+i}, 0xffff, v{P+i}" for i in range(4)]
    fill += [f"    v_add3_u32 v{P+i}, v{P+i}, v{P+12}, {sK}" for i, sK in enumerate(["0", "s32", "s33", "s34"])]
    A(f"    s_movk_i32 s32, {CHUNK}")
    A(f"    s_movk_i32 s33, {2*CHUNK}")
    A(f"    s_movk_i32 s34, {3*CHUNK}")
    v = f"v{P+8}"
    steps = [f"row_shr:{sh} row_mask:0xf" for sh in (1, 2, 4, 8)] + ["row_bcast:15 row_mask:0xa", "row_bcast:31 row_mask:0xc"]
    for k, st in enumerate(steps):
        A(f"    v_add_u32_dpp {v}, {v}, {v} {st} bank_mask:0xf")
        if k < 4:
            A(fill[2*k]); A(fill[2*k+1])
        else:
            A("    s_nop 1")
    A(f"""    v_readlane_b32 {sTot}, {v}, 63
    v_sub_u32 v{P+8}, v{P+8}, v{P+7}
    v_subrev_u32 v{P+8}, {sF0}, v{P+8}
    s_add_u32 {sLim}, {sR0}, {RND}
    s_min_u32 {sLim}, {sLim}, {sTot}
    s_cmp_lt_u32 {sF0}, {sLim}
    s_cbranch_scc0 K2_NOWIN
    v_add_u32 v{P+9}, v{P+8}, v{P+4}
    v_add_u32 v{P+10}, v{P+8}, v{P+5}
    v_add_u32 v{P+11}, v{P+8}, v{P+6}
    v_add_u32 v{P+12}, v{P+8}, v{P+7}
    s_lshl_b32 {sT}, {sWave}, 10
    s_add_u32 {sT}, {sT}, {SCR}
    s_movk_i32 {sT2}, 256""")
    for i in range(4):
        A(f"    v_sub_u32 v{P+i}, v{P+i}, v{P+8+i}")
        A(f"    v_max_i32 v{P+4+i}, 0, v{P+8+i}")
        A(f"    v_min_i32 v{P+13}, {sT2}, v{P+9+i}")
        A(f"    v_cmp_gt_i32 s[{MASK+2*i}:{MASK+2*i+1}], v{P+13}, v{P+4+i}")
        A(f"    v_lshl_add_u32 v{P+4+i}, v{P+4+i}, 2, {sT}")
    A(f"    v_lshl_add_u32 v{P+13}, {vL}, 2, {sT}")
    for i in range(4):
        A(f"    s_mov_b64 exec, s[{MASK+2*i}:{MASK+2*i+1}]")
        A(f"    ds_write_b32 v{P+4+i}, v{P+i}")
    A("    s_mov_b64 exec, -1")
    for i in range(4):
        A(f"    ds_read_b32 v{P+i}, v{P+13} offset:{256*i}")
    A(f"    s_sub_u32 {sT}, {sLim}, {sF0}")
    for i in range(4):
        A(f"    v_add_u32 v{P+4+i}, {64*i}, {vL}")
        A(f"    v_cmp_gt_u32 s[{MASK+2*i}:{MASK+2*i+1}], {sT}, v{P+4+i}")
    A("    s_waitcnt lgkmcnt(0)")
    for st in steps:
        for i in range(4):
            A(f"    v_max_u32_dpp v{P+i}, v{P+i}, v{P+i} {st} bank_mask:0xf")
    A(f"""    v_readlane_b32 {sT}, v{P}, 63
    v_readlane_b32 {sT2}, v{P+1}, 63
    v_readlane_b32 {sRem}, v{P+2}, 63
    v_add_u32 v{P}, v{P}, v{P+4}
    s_max_u32 {sT2}, {sT2}, {sT}
    s_max_u32 {sRem}, {sRem}, {sT2}
    global_load_ubyte v80, v{P}, {sBYT} {RPOL}
    v_max_u32 v{P+1}, {sT}, v{P+1}
    v_max_u32 v{P+2}, {sT2}, v{P+2}
    v_max_u32 v{P+3}, {sRem}, v{P+3}""")
    for i in range(1, 4):
        A(f"    v_add_u32 v{P+i}, v{P+i}, v{P+4+i}")
        A(f"    global_load_ubyte v{80+i}, v{P+i}, {sBYT} {RPOL}")
    for i in range(4):
        A(f"    v_lshlrev_b32 v{P+i}, 4, v{P+i}")
        A(f"    global_load_dwordx4 v[{RAW+4*i}:{RAW+4*i+3}], v{P+i}, {sWS} {RPOL}")
    A(f"""    s_waitcnt vmcnt(8)
    s_branch K2_ISSUED
K2_NOWIN:""")
    for i in range(4):
        A(f"    s_mov_b64 s[{MASK+2*i}:{MASK+2*i+1}], 0")
    A(f"""    s_waitcnt vmcnt(0) lgkmcnt(0)
K2_ISSUED:
    s_barrier
    ;@STAMP 2
    s_cmp_lg_u32 {sR0}, 0
    s_cbranch_scc1 K2_NOW
    v_bfe_u32 v2, {vL}, 3, 2
    s_and_b32 {sT}, {sWave}, 3
    v_xor_b32 v2, {sT}, v2
    v_and_b32 v3, 3, {vL}
    v_lshlrev_b32 v3, 3, v3
    v_lshl_add_u32 v3, v2, 5, v3
    v_bfe_u32 v2, {vL}, 2, 2
    v_lshl_add_u32 v3, v2, 7, v3
    v_lshrrev_b32 v2, 4, {vL}
    v_lshl_add_u32 v3, v2, 10, v3""")
    for f in range(10):
        for u in range(2):
            A(f"    ds_read_b64_tr_b16 v[{WW+4*f+2*u}:{WW+4*f+2*u+1}], v3 offset:{f*4096+u*512}")
    A(f"""    s_cmp_lt_u32 {sWave}, 10
    s_cbranch_scc1 K2_NOW
    s_sub_u32 {sT}, {sWave}, 10
    s_min_u32 {sT2}, {sT}, 4
    s_cmp_eq_u32 {sT}, 5
    s_cselect_b32 {sRem}, 0x80000000, 0
    s_lshl_b32 {sT2}, {sT2}, 7
    s_add_u32 {sT2}, {sT2}, {RADL}
    v_lshl_add_u32 v2, {vL}, 1, {sT2}""")
    for d in range(4):
        A(f"    ds_read_u16 v{P+16+d}, v2 offset:{640*d}")
    A(f"""    s_lshl_b32 {sT}, {sT}, 7
    s_add_u32 {sT}, {sT}, {WZL}
    v_and_b32 v2, 7, {vL}
    v_mul_u32_u24 v2, 768, v2
    v_lshrrev_b32 v3, 3, {vL}
    v_lshlrev_b32 v3, 4, v3
    v_add3_u32 v2, v2, v3, {sT}
    s_waitcnt lgkmcnt(0)""")
    for d in range(4):
        A(f"    v_lshlrev_b32 v{P+16+d}, 16, v{P+16+d}")
        A(f"    v_xor_b32 v{P+16+d}, {sRem}, v{P+16+d}")
    A(f"""    ds_write_b128 v2, v[{P+16}:{P+19}]
K2_NOW:
    v_mov_b32 v{P+13}, 1
    s_mov_b32 {sT}, {CNTL}
    v_lshl_add_u32 v{P+14}, {vL}, 2, {sT}
    s_waitcnt vmcnt(4)
    ;@STAMP 3""")
    for i in range(4):
        A(f"    s_mov_b64 exec, s[{MASK+2*i}:{MASK+2*i+1}]")
        A(f"    v_lshl_add_u32 v{80+i}, v{80+i}, 2, {sT}")
        A(f"    ds_add_rtn_u32 v{84+i}, v{80+i}, v{P+13}")
    A(f"""    s_mov_b64 exec, -1
    v_lshrrev_b32 v{P}, 4, {vL}            ; g
    v_lshlrev_b32 {vZw}, 9, v{P}
    v_lshlrev_b32 v{P}, 4, v{P}
    v_add_u32 v{P}, {RECL}, v{P}           ; REC + g*16
    v_and_b32 v{P+1}, 3, {vL}              ; d
    v_lshl_add_u32 {vA}, v{P+1}, 1, v{P}
    v_add_u32 {vS}, 14, v{P}
    v_bfe_u32 v{P+1}, {vL}, 2, 2
    v_lshl_add_u32 {vY}, v{P+1}, 1, v{P}
    v_add_u32 {vY}, 6, {vY}
    v_and_b32 {vCol}, 15, {vL}
    v_lshlrev_b32 {vCol}, 4, {vCol}
    v_add_u32 {vZw}, {vZw}, {vCol}         ; j*512 + n*16
    s_mov_b32 {sPos}, 0
    s_waitcnt lgkmcnt(0)
    s_barrier
    ;@STAMP 4
    ds_read_b32 v{P}, v{P+14}
    v_mov_b32 v{P+4}, {QW}
    v_mov_b32 v{P+5}, 16
    v_mov_b32 v{vZero+3}, 0x3fff0000
    s_mov_b64 exec, 1
    ds_write_b32 v{P+4}, v{P+5}
    s_mov_b64 exec, -1
    s_waitcnt lgkmcnt(1)
    v_add_u32 v{P+1}, 3, v{P}
    v_and_b32 v{P+1}, -4, v{P+1}
    v_mov_b32 v{P+2}, v{P+1}""")
    dpp_scan(f"v{P+2}")
    A(f"""    v_sub_u32 v{P+3}, v{P+2}, v{P}
    v_sub_u32 v{P+2}, v{P+2}, v{P+1}       ; base
    v_sub_u32 v{P}, v{P+1}, v{P}           ; padding""")
    for i in range(4):
        A(f"    ds_bpermute_b32 v{80+i}, v{80+i}, v{P+3}")
    A(f"""    s_mov_b32 {sT}, {RECL}
    v_cmp_lt_u32 vcc, {sWave}, v{P}
    v_add_u32 v{P+3}, {sWave}, v{P+2}
    v_lshl_add_u32 v{P+3}, v{P+3}, 4, {sT}
    v_lshl_or_b32 {vBP}, v{P+1}, 16, v{P+2}
    s_mov_b64 exec, vcc
    ds_write_b128 v{P+3}, v[{vZero}:{vZero+3}]
    s_mov_b64 exec, -1
    s_waitcnt lgkmcnt(0)""")
    for i in range(4):
        A(f"    v_add_u32 v{80+i}, v{80+i}, v{84+i}")
        A(f"    v_lshl_add_u32 v{80+i}, v{80+i}, 4, {sT}")
    for i in range(4):
        A(f"    s_mov_b64 exec, s[{MASK+2*i}:{MASK+2*i+1}]")
        A(f"    s_waitcnt vmcnt({3-i})")
        A(f"    ds_write_b128 v{80+i}, v[{RAW+4*i}:{RAW+4*i+3}]")
    A(f"""    s_mov_b64 exec, -1
    s_mov_b32 {sItem}, {sWave}
    s_mov_b32 {sH}, -1
    s_waitcnt lgkmcnt(0)
    s_barrier
    ;@STAMP 5
K2_ITEM:
    s_cmp_ge_u32 {sItem}, {sNN2}
    s_cbranch_scc1 K2_DONE
    v_mov_b32 v{TM}, {QW}
    v_mov_b32 v{TM+1}, 1
    s_mov_b64 exec, 1
    ds_add_rtn_u32 {vItem}, v{TM}, v{TM+1}
    s_mov_b64 exec, -1
    s_cmp_ge_u32 {sItem}, {sNN}
    s_cselect_b32 {sT}, 1, 0
    s_cselect_b32 {sT2}, {sNN}, 0
    s_sub_u32 {sNode}, {sItem}, {sT2}
    s_cmp_eq_u32 {sT}, {sH}
    v_readlane_b32 {sBP}, {vBP}, {sNode}
    s_cbranch_scc1 K2_SAMEH
    s_mov_b32 {sH}, {sT}
    ;@STAMP 6
    s_lshl_b32 {sSoff}, {sH}, 8
    v_mbcnt_lo_u32_b32 v{TM+2}, -1, 0
    s_mov_b32 {sT2}, {hex(lut(VAR,0))}
    s_cmov_b32 {sT2}, {hex(lut(VAR,1))}
    v_mbcnt_hi_u32_b32 v{TM+2}, -1, v{TM+2}
    v_and_b32 v{TM+3}, 0x70, {vCol}
    v_lshrrev_b32 v{TM+2}, 3, v{TM+2}
    v_lshlrev_b32 v{TM+2}, 2, v{TM+2}
    v_bfe_u32 {vWz}, {sT2}, v{TM+2}, 4
    v_lshl_add_u32 {vWz}, {vWz}, 7, v{TM+3}
    v_add_u32 {vWz}, {WZL}, {vWz}
K2_SAMEH:
    s_lshr_b32 {sRem}, {sBP}, 16
    s_cbranch_scc0 K2_EMPTY
    s_and_b32 {sT2}, {sRem}, 4
    s_cselect_b32 {sAm}, 0, -1
    s_add_u32 {sRem}, {sRem}, {sT2}
    s_and_b32 {sT}, {sBP}, 0xffff
    s_sub_u32 {sT}, {sT}, {sT2}
    s_lshl_b32 {sT}, {sT}, 4
    s_sub_u32 {sDelta}, {sT}, {sPos}
    s_mov_b32 {sPos}, {sT}
    s_and_b32 {sT}, {sRem}, 31
    s_cmp_eq_u32 {sT}, 8
    s_cbranch_scc1 K2_F1
    s_cmp_eq_u32 {sT}, 16
    s_cbranch_scc1 K2_F2
    s_cmp_eq_u32 {sT}, 24
    s_cbranch_scc1 K2_F3""")
    for nq in (4, 1, 2, 3):
        A(f"K2_F{nq}:")
        kstep(nq, True)
        A(f"    s_movk_i32 {sDelta}, {nq*128}")
        A(f"    s_sub_u32 {sRem}, {sRem}, {nq*8}")
        A(f"    s_cmp_eq_u32 {sRem}, 0")
        A(f"    s_cbranch_scc1 K2_EPI")
        if nq != 3:
            A(f"    s_branch K2_LOOP")
    A("K2_LOOP:")
    A(f"    s_add_u32 {sPos}, {sPos}, {sDelta}")
    kstep(4, False)
    A(f"""    s_movk_i32 {sDelta}, 512
    s_sub_u32 {sRem}, {sRem}, 32
    s_cmp_eq_u32 {sRem}, 0
    s_cbranch_scc0 K2_LOOP
K2_EPI:""")
    for t in range(8):
        A(f"    ds_read_b128 v[{RAW+4*t}:{RAW+4*t+3}], {vWz} offset:{768*t}")
    def zaddr():
        A(f"""    s_lshl_b32 {sT}, {sNode}, 11
    s_and_b32 {sT2}, {sNode}, 7
    s_lshl_b32 {sT2}, {sT2}, 5
    s_or_b32 {sT}, {sT}, {sT2}
    s_or_b32 {sT}, {sT}, {sSoff}
    v_xor_b32 v{TM}, {sT}, {vZw}""")
    zaddr()
    A(f"""    v_readfirstlane_b32 {sItem}, {vItem}
    s_cmp_eq_u32 {sR0}, 0""")
    for q in range(4):
        A(f"    s_waitcnt lgkmcnt({6-2*q})")
        for r in range(4):
            for t in (2*q, 2*q+1):
                op = "v_mul_f32" if r == 0 else "v_fmac_f32"
                A(f"    {op} v{BT+t}, v{RAW+4*t+r}, v{ACC+4*t+r}")
    A("    s_cbranch_scc0 K2_ACC")
    A("K2_NOACC:")
    for q in range(4):
        A(f"    v_cvt_pk_bf16_f32 v{AF+q}, v{BT+2*q}, v{BT+2*q+1}")
    A(f"""    ds_write_b128 v{TM}, v[{AF}:{AF+3}]
    s_branch K2_ITEM
K2_ACC:
    ds_read_b128 v[{AF}:{AF+3}], v{TM}
    s_waitcnt lgkmcnt(0)""")
    for q in range(4):
        A(f"    v_lshlrev_b32 v{TM+1}, 16, v{AF+q}")
        A(f"    v_and_b32 v{TM+2}, 0xffff0000, v{AF+q}")
        A(f"    v_add_f32 v{BT+2*q}, v{BT+2*q}, v{TM+1}")
        A(f"    v_add_f32 v{BT+2*q+1}, v{BT+2*q+1}, v{TM+2}")
    A(f"""    s_branch K2_NOACC
K2_EMPTY:
    s_waitcnt lgkmcnt(0)
    v_readfirstlane_b32 {sItem}, {vItem}
    s_cmp_eq_u32 {sR0}, 0
    s_cbranch_scc0 K2_ITEM""")
    zaddr()
    A(f"""    v_mov_b64 v[{AF}:{AF+1}], 0
    v_mov_b64 v[{AF+2}:{AF+3}], 0
    ds_write_b128 v{TM}, v[{AF}:{AF+3}]
    s_branch K2_ITEM
K2_DONE:
    ;@STAMP 7
    s_add_u32 {sF0}, {sF0}, {RND}
    s_add_u32 {sR0}, {sR0}, {RND}
    s_cmp_lt_u32 {sR0}, {sTot}
    v_mbcnt_lo_u32_b32 v0, -1, 0
    v_mbcnt_hi_u32_b32 v0, -1, v0          ; lane
    s_waitcnt lgkmcnt(0)
    s_barrier
    s_cbranch_scc1 K2_ROUND
    ;@STAMP 8
    s_lshr_b32 {sNode}, {sWave}, 2
    s_lshl_b32 {sNode}, {sNode}, 4
    s_cmp_ge_u32 {sNode}, {sNN}
    s_cbranch_scc1 K2_END
    v_and_b32 v2, 15, v0
    v_add_u32 v2, {sNode}, v2
    v_lshrrev_b32 v3, 4, v0                ; g
    v_and_b32 v4, 7, v2
    v_lshlrev_b32 v4, 1, v4
    v_xor_b32 v4, v4, v3
    v_lshlrev_b32 v4, 4, v4
    v_lshl_add_u32 v4, v2, 11, v4
    v_xor_b32 v5, 64, v4
    v_xor_b32 v6, 128, v4
    v_xor_b32 v7, 192, v4""")
    terms = [(0, 0, 0), (1, 4, 2), (2, 8, 2), (3, 12, 2),
             (0, 5, 1), (1, 1, 3), (2, 2, 3), (3, 3, 3),
             (0, 10, 1), (1, 11, 4), (2, 13, 4), (3, 6, 4),
             (0, 15, 1), (1, 14, 4), (2, 7, 4), (3, 9, 4)]
    seq = [(c, jk, blk, s) for s in range(2) for (c, jk, blk) in terms]
    seq = seq[:25] + [seq[28]] + seq[25:28] + seq[29:]
    NS = len(seq)
    OUT = 8
    ZR = 64
    NBUF = 14
    started = set()
    def zread(k):
        c, zb, blk, s = seq[k]
        r = ZR + 4 * (k % NBUF)
        A(f"    ds_read_b128 v[{r}:{r+3}], v{4+(zb&1)*2+s} offset:{(zb>>1)*256}")
    for k in range(NBUF):
        zread(k)
    A(f"""    s_and_b32 {sT}, {sWave}, 3
    v_add_u32 v1, {sN0}, v2
    v_lshlrev_b32 v1, 9, v1
    v_lshl_add_u32 v1, v3, 3, v1
    s_lshl_b32 {sT}, {sT}, 5
    v_add_u32 v1, {sT}, v1""")
    for k in range(NS):
        c, zb, blk, s = seq[k]
        issued = min(NS, k + NBUF)
        A(f"    s_waitcnt lgkmcnt({issued-k-1})")
        r = ZR + 4 * (k % NBUF)
        w = WW + 4 * (blk * 2 + s)
        cc = f"v[{OUT+4*c}:{OUT+4*c+3}]" if c in started else "0"
        started.add(c)
        A(f"    v_mfma_f32_16x16x32_bf16 v[{OUT+4*c}:{OUT+4*c+3}], v[{w}:{w+3}], v[{r}:{r+3}], {cc}")
        if k + NBUF < NS:
            zread(k + NBUF)
    G = 120; O = 24
    A(f"""    v_cmp_gt_u32 vcc, {sNN}, v2
    s_mov_b32 {sT}, 0xbfb8aa3b""")
    for r in range(4):
        A(f"    v_mul_f32 v{G+r}, {sT}, v{OUT+r}")
    for r in range(4):
        A(f"    v_exp_f32 v{G+r}, v{G+r}")
    A("    s_nop 0")
    for r in range(4):
        A(f"    v_add_f32 v{G+r}, 1.0, v{G+r}")
    for r in range(4):
        A(f"    v_rcp_f32 v{G+r}, v{G+r}")
    A("    s_and_b64 exec, exec, vcc")
    A(f"    v_cvt_pk_bf16_f32 v{O}, v{OUT}, v{OUT+1}")
    A(f"    v_cvt_pk_bf16_f32 v{O+1}, v{OUT+2}, v{OUT+3}")
    A(f"    global_store_dwordx2 v1, v[{O}:{O+1}], s[6:7]")
    for c in range(1, 4):
        for r in range(4):
            A(f"    v_mul_f32 v{OUT+4*c+r}, v{OUT+4*c+r}, v{G+r}")
        A(f"    v_cvt_pk_bf16_f32 v{O+2*c}, v{OUT+4*c}, v{OUT+4*c+1}")
        A(f"    v_cvt_pk_bf16_f32 v{O+1+2*c}, v{OUT+4*c+2}, v{OUT+4*c+3}")
        A(f"    global_store_dwordx2 v1, v[{O+2*c}:{O+1+2*c}], s[6:7] offset:{128*c}")
    if STAMPS:
        A(f"""    ;@STAMP 9
    s_waitcnt vmcnt(0)
    ;@STAMP 10
    ;@STAMPOUT 1 {sWS} {sWave}""")
    A("""K2_END:
    s_endpgm""")

def kd(name, vgpr, sgpr):
    A(".p2align 6")
    A(f""".amdhsa_kernel {name}
  .amdhsa_next_free_vgpr {vgpr}
  .amdhsa_next_free_sgpr {sgpr}
  .amdhsa_accum_offset {(vgpr+3)//4*4}
  .amdhsa_group_segment_fixed_size 0
  .amdhsa_kernarg_size 96
  .amdhsa_user_sgpr_count 2
  .amdhsa_user_sgpr_kernarg_segment_ptr 1
  .amdhsa_system_sgpr_workgroup_id_x 1
  .amdhsa_float_denorm_mode_32 3
.end_amdhsa_kernel""")

A(HEADER)
A(f"; @launch kernel=bin_kernel grid=(256,1,1) block=({K1_THR},1,1) lds={K1_LDS}")
A(f"; @launch kernel=agg_kernel grid=(256,1,1) block=(1024,1,1) lds={K2_LDS}")
A('.amdgcn_target "amdgcn-amd-amdhsa--gfx950"')
A(".text")
A(".globl bin_kernel")
A(".globl agg_kernel")
gen_k1()
gen_k2()
A('.section .rodata,"a"')
kd("bin_kernel", 64, 80 if STAMPS else 32)
kd("agg_kernel", 128, 80 if STAMPS else 56)
out = sys.argv[1] if len(sys.argv) > 1 else "standalone__tensor_product_equiv_equiformer__graph.s"
open(out, "w").write("\n".join(L) + "\n")
print("wrote", out, len(L), "lines")
```

```python
import sys

N = 12500; E = 800000; CHUNK = 3200; NCH = 250; NB = 256; NPB = 49
REC_OFF = 0
BYT_OFF = 256 * CHUNK * 16
TAB_OFF = BYT_OFF + 256 * CHUNK + 8192

L = []
def A(s=""):
    for ln in s.split("\n"):
        t = ln.strip()
        if t.startswith(";@STAMPOUT"):
            _, k, ws, wv = t.split()
            stamp_out(int(k), ws, wv)
        elif t.startswith(";@STAMP"):
            stamp(int(t.split()[1]))
        else:
            L.append(ln)

HEADER = """; Kernarg layout for this problem (96 bytes, ptrs only, base s[0:1]):
; destination node, aggregates with MFMA, applies the radial weights, the two linear maps and the gate."""

import os
STAMPS = os.environ.get("STAMPS") == "1"
STAMP_OFF = 32 << 20
def opt(name, dflt):
    return os.environ.get(name, dflt)
NT = opt("NT", "nt"); SC = opt("SC", "sc1"); PF = int(opt("PF", "0")); XW = int(opt("XW", "2")); OPOL = opt("OPOL", ""); WWARM = int(opt("WWARM", "1")); RPOL = opt("RPOL", "")
def stamp(i):
    if STAMPS:
        A(f"""    s_waitcnt lgkmcnt(0)
    s_memrealtime s[62:63]
    s_waitcnt lgkmcnt(0)
    s_mov_b32 s{64+i}, s62""")
def stamp_out(kidx, ws, wavereg):
    if STAMPS:
        A(f"""    s_mov_b64 exec, 1
    s_lshl_b32 s62, s2, 4
    s_add_u32 s62, s62, {wavereg}
    s_lshl_b32 s62, s62, 6
    s_add_u32 s62, s62, {STAMP_OFF + kidx*(1<<20)}
    v_mov_b32 v60, s62""")
        for i in range(12):
            A(f"    v_mov_b32 v61, s{64+i}")
            A(f"    global_store_dword v60, v61, {ws} offset:{4*i}")

def dpp_scan(v):
    for sh in (1, 2, 4, 8):
        A("    s_nop 1")
        A(f"    v_add_u32_dpp {v}, {v}, {v} row_shr:{sh} row_mask:0xf bank_mask:0xf")
    A("    s_nop 1")
    A(f"    v_add_u32_dpp {v}, {v}, {v} row_bcast:15 row_mask:0xa bank_mask:0xf")
    A("    s_nop 1")
    A(f"    v_add_u32_dpp {v}, {v}, {v} row_bcast:31 row_mask:0xc bank_mask:0xf")

K1_STG = 0; K1_BYT = 51200; K1_CNT = 54400; K1_BASE = 55424; K1_LDS = 56448
K1_THR = 1024 if PF else 832

def gen_k1():
    A(".p2align 8")
    A(".type bin_kernel,@function")
    A("bin_kernel:")
    A(f"""    s_cmp_ge_u32 s2, 256
    s_cbranch_scc1 K1_END
    s_load_dwordx4 s[4:7], s[0:1], 8
    s_load_dwordx4 s[8:11], s[0:1], 24
    s_load_dwordx2 s[18:19], s[0:1], 88    ; ws
    v_readfirstlane_b32 s23, v0""")
    if PF:
        A("""    s_cmp_ge_u32 s23, 832
    s_cbranch_scc1 K1_PF""")
    A(f"""    s_cmp_ge_u32 s2, {NCH}
    s_cbranch_scc1 {'K1_W' if WWARM else 'K1_END'}
    ;@STAMP 0
    s_mul_i32 s3, s2, {CHUNK//4}
    v_add_u32 v1, s3, v0
    v_lshlrev_b32 v2, 4, v1
    v_lshlrev_b32 v3, 5, v1
    v_mul_u32_u24 v28, 24, v1
    v_and_b32 v29, 255, v0
    v_lshlrev_b32 v29, 2, v29
    v_mov_b32 v30, 0
    ds_write_b32 v29, v30 offset:{K1_CNT}
    v_cmp_gt_u32 vcc, {CHUNK//4}, v0
    s_mov_b64 s[20:21], vcc
    s_mov_b64 exec, vcc
    s_waitcnt lgkmcnt(0)
    global_load_dwordx4 v[4:7], v2, s[10:11] {NT}           ; dst
    s_barrier
    global_load_dwordx4 v[8:11], v2, s[8:9] {NT}            ; src
    global_load_dwordx4 v[12:15], v3, s[6:7] {NT}           ; e_attr
    global_load_dwordx4 v[16:19], v3, s[6:7] offset:16 {NT}
    global_load_dwordx3 v[20:22], v28, s[4:5] {NT}          ; rhat
    global_load_dwordx3 v[24:26], v28, s[4:5] offset:12 {NT}
    v_mov_b32 v30, 1
    s_movk_i32 s22, -{NPB}
    s_and_b32 s24, s2, 7
    s_lshl_b32 s24, s24, 5
    s_lshr_b32 s25, s2, 3
    s_add_u32 s26, s24, s25
    s_waitcnt vmcnt(5)
    ;@STAMP 1""")
    for i in range(4):
        A(f"    v_mul_u32_u24 v{32+i}, 21400, v{4+i}")
    for i in range(4):
        A(f"    v_lshrrev_b32 v{32+i}, 20, v{32+i}          ; bucket")
    for i in range(4):
        A(f"    v_mad_i32_i24 v{4+i}, v{32+i}, s22, v{4+i}")
    for i in range(4):
        A(f"    v_lshlrev_b32 v{32+i}, 2, v{32+i}")
        A(f"    ds_add_rtn_u32 v{36+i}, v{32+i}, v30 offset:{K1_CNT}")
    A(f"""    s_mov_b64 exec, -1
    v_and_b32 v1, 63, v0
    v_lshlrev_b32 v2, 4, v1
    s_waitcnt lgkmcnt(0)
    s_barrier
    ;@STAMP 2
    ds_read_b128 v[40:43], v2 offset:{K1_CNT}
    s_waitcnt lgkmcnt(0)
    v_add_u32 v45, v40, v41
    v_add_u32 v46, v45, v42
    v_add_u32 v47, v46, v43
    v_mov_b32 v48, v47""")
    dpp_scan("v48")
    A(f"""    v_sub_u32 v52, v48, v47
    v_add_u32 v53, v52, v40
    v_add_u32 v54, v52, v45
    v_add_u32 v55, v52, v46
    ds_write_b128 v2, v[52:55] offset:{K1_BASE}
    s_mov_b64 exec, s[20:21]
    s_waitcnt lgkmcnt(0)""")
    for i in range(4):
        A(f"    ds_read_b32 v{32+i}, v{32+i} offset:{K1_BASE}")
    A(f"""    s_cmp_lt_u32 s23, 768
    s_cbranch_scc1 K1_NOTAB
    s_mov_b64 exec, -1
    s_lshl_b32 s24, s26, 2
    s_add_u32 s24, s24, {TAB_OFF}
    v_lshlrev_b32 v44, 12, v1
    v_add_u32 v44, s24, v44""")
    for i in range(4):
        A(f"    v_lshl_or_b32 v{56+i}, v{40+i}, 16, v{52+i}")
        A(f"    global_store_dword v44, v{56+i}, s[18:19] offset:{1024*i}")
    A(f"""    s_mov_b64 exec, s[20:21]
    s_waitcnt vmcnt(4)
    s_branch K1_TABDONE
K1_NOTAB:
    s_waitcnt vmcnt(0)
K1_TABDONE:
    ;@STAMP 3
    s_mov_b32 s24, 0x05040100
    v_alignbit_b32 v28, v22, v21, 16
    v_alignbit_b32 v29, v9, v22, 16
    v_perm_b32 v21, v8, v21, s24
    v_alignbit_b32 v30, v26, v25, 16
    v_alignbit_b32 v31, v11, v26, 16
    v_perm_b32 v25, v10, v25, s24
    s_waitcnt lgkmcnt(0)""")
    ypair = [20, 28, 24, 30]
    for i in range(4):
        A(f"    v_add_u32 v{32+i}, v{32+i}, v{36+i}")
        A(f"    v_lshlrev_b32 v{36+i}, 4, v{32+i}")
        A(f"    ds_write2_b64 v{36+i}, v[{12+2*i}:{13+2*i}], v[{ypair[i]}:{ypair[i]+1}] offset0:0 offset1:1")
        A(f"    ds_write_b8 v{32+i}, v{4+i} offset:{K1_BYT}")
    A(f"""    v_lshlrev_b32 v2, 4, v0
    s_mul_i32 s24, s26, {CHUNK*16}
    s_mul_i32 s25, s26, {CHUNK}
    s_add_u32 s25, s25, {BYT_OFF}
    v_add_u32 v3, s24, v2
    v_add_u32 v4, {1*12800}, v3
    v_add_u32 v5, {2*12800}, v3
    v_add_u32 v6, {3*12800}, v3
    v_add_u32 v7, s25, v2
    s_waitcnt lgkmcnt(0)
    s_barrier
    ;@STAMP 4""")
    for i in range(4):
        A(f"    ds_read_b128 v[{8+4*i}:{11+4*i}], v2 offset:{12800*i}")
    for i in range(4):
        A(f"    s_waitcnt lgkmcnt({3-i})")
        A(f"    global_store_dwordx4 v{3+i}, v[{8+4*i}:{11+4*i}], s[18:19] {SC}")
    A(f"""    v_cmp_gt_u32 vcc, {CHUNK//16}, v0
    s_and_b64 exec, exec, vcc
    s_cbranch_execz K1_NOBYT
    ds_read_b128 v[24:27], v2 offset:{K1_BYT}
    s_waitcnt lgkmcnt(0)
    global_store_dwordx4 v7, v[24:27], s[18:19] {SC}
K1_NOBYT:""")
    if PF == 5: A("    s_barrier")
    if STAMPS:
        A("""    ;@STAMP 5
    s_waitcnt vmcnt(0)
    ;@STAMP 6
    s_lshr_b32 s23, s23, 6
    ;@STAMPOUT 0 s[18:19] s23""")
    A("    s_endpgm")
    if WWARM:
        A("""K1_W:
    s_load_dwordx4 s[12:15], s[0:1], 40
    s_load_dwordx2 s[16:17], s[0:1], 56    ; w_si1
    s_cmp_ge_u32 s23, 192
    s_cbranch_scc1 K1_END
    v_lshlrev_b32 v1, 7, v0
    v_min_u32 v2, 16256, v1
    v_min_u32 v3, 2432, v1
    s_waitcnt lgkmcnt(0)
    global_load_dword v4, v1, s[16:17]
    global_load_dword v5, v2, s[14:15]
    global_load_dword v6, v3, s[12:13]
    s_endpgm""")
    if PF:
        A(f"""K1_PF:
    s_load_dwordx2 s[12:13], s[0:1], 0     ; x
    s_mov_b32 s14, {N*512}
    s_mov_b32 s15, 0x00020000
    v_subrev_u32 v1, 832, v0               ; 0..191
    v_lshrrev_b32 v2, 1, v1
    v_and_b32 v1, 1, v1
    v_lshlrev_b32 v1, 7, v1
    v_lshl_add_u32 v1, v2, 9, v1
    s_lshr_b32 s3, s2, 3
    s_mul_i32 s3, s3, {391*512}
    s_mul_i32 s16, s2, {49*512}
    s_add_u32 s16, s16, 256
    v_add_u32 v3, s3, v1
    v_cmp_gt_u32 vcc, {NPB}, v2
    v_add_u32 v8, s16, v1
    v_mov_b32 v9, 0x7fffff00
    v_cndmask_b32 v8, v9, v8, vcc
    v_cmp_gt_u32 vcc, {391-4*96}, v2""")
        for i in range(1, 5):
            A(f"    v_add_u32 v{3+i}, {96*512*i}, v3")
        A("""    v_cndmask_b32 v7, v9, v7, vcc
    s_waitcnt lgkmcnt(0)""")
        if PF >= 3:
            A(f"""    v_subrev_u32 v1, 832, v0
    s_mul_i32 s16, s2, {49*512}
    v_cmp_gt_u32 vcc, 4, v1
    v_lshl_add_u32 v3, v1, 7, s16
    v_add_u32 v4, {192*128}, v3
    v_cndmask_b32 v4, v9, v4, vcc""")
        nb = {1: 2, 2: 1, 3: 2, 4: 1, 5: 3}[PF]
        for i in range(nb): A("    s_barrier")
        if PF == 5: A("    s_barrier")
        for i in range(6 if PF < 3 else 2):
            A(f"    buffer_load_dword v{10+i}, v{3+i}, s[12:15], 0 offen")
        for i in range(2 - nb): A("    s_barrier")
        if PF != 5: A("    s_barrier")
        A("    s_waitcnt vmcnt(0)")
        if STAMPS:
            A("""    ;@STAMP 0
    ;@STAMP 1
    ;@STAMP 2
    ;@STAMP 3
    ;@STAMP 4
    ;@STAMP 5
    ;@STAMP 6
    s_lshr_b32 s23, s23, 6
    ;@STAMPOUT 0 s[18:19] s23""")
    A("""K1_END:
    s_endpgm""")

ZS = 2048
ZEND = NPB * ZS
WZL = ZEND
CNTL = WZL + 6144
assert CNTL % 256 == 0
QW = CNTL + 256
RECL = QW + 16
K2_LDS = 163840
RND = (K2_LDS - RECL) // 16 - NPB * 3
SCR = RECL
WST = 0
RADL = 40960

vA, vY, vS, vCol, vZw, vWz, vBP, vItem = [f"v{i}" for i in range(8)]
TM = 8; AF = 12; BT = 16; WW = 24; RAW = 64; ACC = 96
sX = "s[8:11]"
sWS = "s[12:13]"
sN0 = "s14"; sNN = "s15"; sWave = "s16"; sF0 = "s17"; sTot = "s18"; sPos = "s19"; sDelta = "s20"
sItem = "s21"; sH = "s22"; sNode = "s23"; sBP = "s24"; sRem = "s25"; sSelLo = "s26"; sSelHi = "s27"
sT = "s28"; sT2 = "s29"; sNN2 = "s30"; sSoff = "s31"; sB = "s3"; sR0 = "s50"; sLim = "s51"; sAm = "s52"; sGC = "s53"; sNL = "s54"
MASK = 32
sJM = "s[40:41]"
sBYT = "s[42:43]"
sRAD = "s[44:45]"; sW0 = "s[46:47]"; sW1 = "s[48:49]"
BLK = [0, 5, 6, 7, 2, 1, 10, 9, 3, 10, 1, 8, 4, 9, 8, 1]
VAR = [0, 3, 3, 3, 2, 1, 4, 5, 2, 5, 1, 4, 2, 4, 5, 1]
def lut(tab, h):
    v = 0
    for j in range(4):
        for b in range(2):
            v |= tab[4*j + 2*h + b] << (4 * (2*j + b))
    return v

def kstep(nq, first):
    n = 2 * nq
    YR = [AF, AF+1, AF+2, AF+3, TM, TM+1, TM+2, TM+3]
    sreg = lambda i: (TM if (first and i == 0) else RAW + 4 * i)
    A(f"    v_add_u32 {vS}, {sDelta}, {vS}")
    A(f"    v_add_u32 {vA}, {sDelta}, {vA}")
    for i in range(n):
        A(f"    ds_read_u16 v{sreg(i)}, {vS} offset:{64*i}")
    na = min(n, 6)
    for i in range(na):
        A(f"    ds_read_u16_d16_hi v{BT+i}, {vA} offset:{64*i}")
    A(f"    v_add_u32 {vY}, {sDelta}, {vY}")
    if first:
        A(f"    v_mov_b64 v[{RAW}:{RAW+1}], 0")
        A(f"    v_mov_b64 v[{RAW+2}:{RAW+3}], 0")
        A(f"    s_cmp_eq_u32 {sAm}, 0")
    for i in range(n):
        if i % 2 == 0:
            A(f"    s_waitcnt lgkmcnt({n-2-i+na})")
        if first and i == 0:
            A(f"    s_cbranch_scc1 K2_SK{nq}")
        A(f"    v_lshl_add_u32 v{sreg(i)}, v{sreg(i)}, 9, {vCol}")
        A(f"    buffer_load_dwordx4 v[{RAW+4*i}:{RAW+4*i+3}], v{sreg(i)}, {sX}, {sSoff} offen")
        if first and i == 0:
            A(f"K2_SK{nq}:")
    for i in range(na, n):
        A(f"    ds_read_u16_d16_hi v{BT+i}, {vA} offset:{64*i}")
    A(f"    s_mov_b64 exec, {sJM}")
    for i in range(n):
        A(f"    ds_read_u16_d16_hi v{YR[i]}, {vY} offset:{64*i}")
    A("    s_waitcnt lgkmcnt(0)")
    for i in range(n):
        A(f"    v_mul_f32 v{BT+i}, v{BT+i}, v{YR[i]}")
    A(f"    s_mov_b64 exec, -1")
    if first:
        A(f"    v_and_b32 v{BT}, {sAm}, v{BT}")
    for q in range(nq):
        A(f"    v_cvt_pk_bf16_f32 v{AF+q}, v{BT+2*q}, v{BT+2*q+1}")
    q = nq
    while q < 4:
        if q % 2 == 0:
            for b in (AF, BT, BT+4):
                A(f"    v_mov_b64 v[{b+q}:{b+q+1}], 0")
            q += 2
        else:
            for b in (AF, BT, BT+4):
                A(f"    v_mov_b32 v{b+q}, 0")
            q += 1
    A("    s_waitcnt vmcnt(0)")
    def perms(t):
        b = BT + 4 * (t & 1)
        sel = sSelHi if (t & 1) else sSelLo
        for q in range(nq):
            A(f"    v_perm_b32 v{b+q}, v{RAW+4*(2*q+1)+(t>>1)}, v{RAW+4*(2*q)+(t>>1)}, {sel}")
    def mfma(t):
        b = BT + 4 * (t & 1)
        c = "0" if first else f"v[{ACC+4*t}:{ACC+4*t+3}]"
        A(f"    v_mfma_f32_16x16x32_bf16 v[{ACC+4*t}:{ACC+4*t+3}], v[{AF}:{AF+3}], v[{b}:{b+3}], {c}")
    perms(0)
    for t in range(8):
        if t < 7:
            perms(t + 1)
            if nq == 1 and t == 0:
                A("    s_nop 0")
        else:
            A("    s_nop 0")
        mfma(t)

def gen_k2():
    A(".p2align 8")
    A(".type agg_kernel,@function")
    A("agg_kernel:")
    P = 96
    vL = "v126"; vZero = 120
    A(f"""    s_cmp_ge_u32 s2, 256
    s_cbranch_scc1 K2_END
    s_load_dwordx2 {sWS}, s[0:1], 88       ; ws
    s_load_dwordx4 s[44:47], s[0:1], 40
    s_load_dwordx2 {sW1}, s[0:1], 56       ; w_si1
    s_load_dwordx2 s[8:9], s[0:1], 0       ; x
    s_load_dwordx2 s[6:7], s[0:1], 72      ; out
    ;@STAMP 0
    s_and_b32 {sB}, s2, 7
    s_lshl_b32 {sB}, {sB}, 5
    s_lshr_b32 {sT}, s2, 3
    s_add_u32 {sB}, {sB}, {sT}             ; bucket
    v_lshrrev_b32 v1, 6, v0
    v_and_b32 {vL}, 63, v0                 ; lane
    v_readfirstlane_b32 {sWave}, v1
    s_mul_i32 {sN0}, {sB}, {NPB}
    s_sub_u32 {sNN}, {N}, {sN0}
    s_min_u32 {sNN}, {sNN}, {NPB}
    s_lshl_b32 {sNN2}, {sNN}, 1
    s_sub_u32 {sNL}, {sNN}, 1
    s_mov_b32 s10, {N*512}
    s_mov_b32 s11, 0x00020000
    s_mov_b32 {sSelLo}, 0x05040100
    s_mov_b32 {sSelHi}, 0x07060302
    s_mov_b32 s40, 0xfff0fff0
    s_mov_b32 s41, 0xfff0fff0
    s_lshl_b32 {sF0}, {sWave}, 8
    s_lshl_b32 {sB}, {sB}, 10
    s_add_u32 {sB}, {sB}, {TAB_OFF}
    v_bfe_u32 v2, v0, 4, 1
    v_bfe_u32 v3, v0, 6, 1
    v_lshl_or_b32 v2, v3, 1, v2
    v_lshlrev_b32 v2, 1, v2
    v_xor_b32 v2, v2, v0
    v_lshlrev_b32 v2, 4, v2
    v_lshl_add_u32 v4, {vL}, 4, {sB}
    s_lshl_b32 {sT}, {sWave}, 10
    s_mov_b32 {sR0}, 0
    s_mov_b32 m0, {sT}
    s_waitcnt lgkmcnt(0)
    global_load_dwordx4 v[{P}:{P+3}], v4, {sWS}
    s_barrier
    global_load_lds_dwordx4 v2, {sW0}
    s_add_u32 m0, {sT}, 16384
    s_cmp_lt_u32 {sWave}, 8
    global_load_lds_dwordx4 v2, {sW1}
    s_cbranch_scc0 K2_RAD
    s_add_u32 m0, {sT}, 32768
    v_add_u32 v2, 16384, v2
    global_load_lds_dwordx4 v2, {sW1}
    s_branch K2_DMADONE
K2_RAD:
    s_mul_i32 {sT}, {sWave}, 320
    s_add_u32 m0, {sT}, {RADL - 8*320}
    s_sub_u32 {sT}, {sT}, {8*320}
    v_lshl_add_u32 v2, {vL}, 4, {sT}
    s_mov_b64 exec, 0xfffff
    global_load_lds_dwordx4 v2, {sRAD}
    s_mov_b64 exec, -1
K2_DMADONE:
    v_mov_b64 v[{vZero}:{vZero+1}], 0
    v_mov_b64 v[{vZero+2}:{vZero+3}], 0
    v_lshlrev_b32 v2, 4, v0
    s_add_u32 s42, s12, {BYT_OFF}
    s_addc_u32 s43, s13, 0
    v_add_u32 v3, {SCR}, v2
    ds_write_b128 v3, v[{vZero}:{vZero+3}]           ; marks
    v_lshlrev_b32 v3, 2, {vL}
    v_add_u32 v3, {CNTL}, v3
    ds_write_b32 v3, v{vZero}
    s_waitcnt vmcnt(3)
    s_branch K2_HAVETAB
K2_ROUND:
    v_mbcnt_lo_u32_b32 {vL}, -1, 0
    v_mbcnt_hi_u32_b32 {vL}, -1, {vL}      ; lane
    v_mov_b64 v[{vZero}:{vZero+1}], 0
    v_mov_b64 v[{vZero+2}:{vZero+3}], 0
    v_lshl_add_u32 v4, {vL}, 4, {sB}
    global_load_dwordx4 v[{P}:{P+3}], v4, {sWS}
    s_lshl_b32 {sT}, {sWave}, 10
    s_add_u32 {sT}, {sT}, {SCR}
    v_lshl_add_u32 v3, {vL}, 4, {sT}
    ds_write_b128 v3, v[{vZero}:{vZero+3}]
    v_lshlrev_b32 v3, 2, {vL}
    v_add_u32 v3, {CNTL}, v3
    ds_write_b32 v3, v{vZero}
    s_waitcnt vmcnt(0)
K2_HAVETAB:
    ;@STAMP 1
    s_mov_b32 vcc_lo, 0x80800000
    s_mov_b32 vcc_hi, 0x80808080
    v_mul_u32_u24 v{P+12}, {4*CHUNK}, {vL}
    v_cndmask_b32 v{P+3}, v{P+3}, v{vZero}, vcc""")
    for i in range(4):
        A(f"    v_lshrrev_b32 v{P+4+i}, 16, v{P+i}           ; count")
    A(f"""    v_add_u32 v{P+5}, v{P+5}, v{P+4}
    v_add_u32 v{P+6}, v{P+6}, v{P+5}
    v_add_u32 v{P+7}, v{P+7}, v{P+6}
    v_mov_b32 v{P+8}, v{P+7}""")
    fill = [f"    v_and_b32 v{P+i}, 0xffff, v{P+i}" for i in range(4)]
    fill += [f"    v_add3_u32 v{P+i}, v{P+i}, v{P+12}, {sK}" for i, sK in enumerate(["0", "s32", "s33", "s34"])]
    A(f"    s_movk_i32 s32, {CHUNK}")
    A(f"    s_movk_i32 s33, {2*CHUNK}")
    A(f"    s_movk_i32 s34, {3*CHUNK}")
    v = f"v{P+8}"
    steps = [f"row_shr:{sh} row_mask:0xf" for sh in (1, 2, 4, 8)] + ["row_bcast:15 row_mask:0xa", "row_bcast:31 row_mask:0xc"]
    for k, st in enumerate(steps):
        A(f"    v_add_u32_dpp {v}, {v}, {v} {st} bank_mask:0xf")
        if k < 4:
            A(fill[2*k]); A(fill[2*k+1])
        else:
            A("    s_nop 1")
    A(f"""    v_readlane_b32 {sTot}, {v}, 63
    v_sub_u32 v{P+8}, v{P+8}, v{P+7}
    v_subrev_u32 v{P+8}, {sF0}, v{P+8}
    s_add_u32 {sLim}, {sR0}, {RND}
    s_min_u32 {sLim}, {sLim}, {sTot}
    s_cmp_lt_u32 {sF0}, {sLim}
    s_cbranch_scc0 K2_NOWIN
    v_add_u32 v{P+9}, v{P+8}, v{P+4}
    v_add_u32 v{P+10}, v{P+8}, v{P+5}
    v_add_u32 v{P+11}, v{P+8}, v{P+6}
    v_add_u32 v{P+12}, v{P+8}, v{P+7}
    s_lshl_b32 {sT}, {sWave}, 10
    s_add_u32 {sT}, {sT}, {SCR}
    s_movk_i32 {sT2}, 256""")
    for i in range(4):
        A(f"    v_sub_u32 v{P+i}, v{P+i}, v{P+8+i}")
        A(f"    v_max_i32 v{P+4+i}, 0, v{P+8+i}")
        A(f"    v_min_i32 v{P+13}, {sT2}, v{P+9+i}")
        A(f"    v_cmp_gt_i32 s[{MASK+2*i}:{MASK+2*i+1}], v{P+13}, v{P+4+i}")
        A(f"    v_lshl_add_u32 v{P+4+i}, v{P+4+i}, 2, {sT}")
    A(f"    v_lshl_add_u32 v{P+13}, {vL}, 2, {sT}")
    for i in range(4):
        A(f"    s_mov_b64 exec, s[{MASK+2*i}:{MASK+2*i+1}]")
        A(f"    ds_write_b32 v{P+4+i}, v{P+i}")
    A("    s_mov_b64 exec, -1")
    for i in range(4):
        A(f"    ds_read_b32 v{P+i}, v{P+13} offset:{256*i}")
    A(f"    s_sub_u32 {sT}, {sLim}, {sF0}")
    for i in range(4):
        A(f"    v_add_u32 v{P+4+i}, {64*i}, {vL}")
        A(f"    v_cmp_gt_u32 s[{MASK+2*i}:{MASK+2*i+1}], {sT}, v{P+4+i}")
    A("    s_waitcnt lgkmcnt(0)")
    for st in steps:
        for i in range(4):
            A(f"    v_max_u32_dpp v{P+i}, v{P+i}, v{P+i} {st} bank_mask:0xf")
    A(f"""    v_readlane_b32 {sT}, v{P}, 63
    v_readlane_b32 {sT2}, v{P+1}, 63
    v_readlane_b32 {sRem}, v{P+2}, 63
    v_add_u32 v{P}, v{P}, v{P+4}
    s_max_u32 {sT2}, {sT2}, {sT}
    s_max_u32 {sRem}, {sRem}, {sT2}
    global_load_ubyte v80, v{P}, {sBYT} {RPOL}
    v_max_u32 v{P+1}, {sT}, v{P+1}
    v_max_u32 v{P+2}, {sT2}, v{P+2}
    v_max_u32 v{P+3}, {sRem}, v{P+3}""")
    for i in range(1, 4):
        A(f"    v_add_u32 v{P+i}, v{P+i}, v{P+4+i}")
        A(f"    global_load_ubyte v{80+i}, v{P+i}, {sBYT} {RPOL}")
    for i in range(4):
        A(f"    v_lshlrev_b32 v{P+i}, 4, v{P+i}")
        A(f"    global_load_dwordx4 v[{RAW+4*i}:{RAW+4*i+3}], v{P+i}, {sWS} {RPOL}")
    A(f"""    s_waitcnt vmcnt(8)
    s_branch K2_ISSUED
K2_NOWIN:""")
    for i in range(4):
        A(f"    s_mov_b64 s[{MASK+2*i}:{MASK+2*i+1}], 0")
    A(f"""    s_waitcnt vmcnt(0) lgkmcnt(0)
K2_ISSUED:
    s_barrier
    ;@STAMP 2
    s_cmp_lg_u32 {sR0}, 0
    s_cbranch_scc1 K2_NOW""")
    if XW:
        A(f"""    s_cmp_lt_u32 {sWave}, 14
    s_cbranch_scc1 K2_NOXW
    s_lshl_b32 {sT}, {sWave}, 7
    s_mul_i32 {sT2}, s2, {NPB*512}
    s_and_b32 {sT}, {sT}, 128
    s_add_u32 {sT}, {sT}, {sT2}
    v_min_u32 v2, {NPB-1}, {vL}
    v_lshl_add_u32 v2, v2, 9, {sT}
    buffer_load_dword v{P+20}, v2, {sX}, 0 offen""")
        if XW == 2:
            A(f"    buffer_load_dword v{P+21}, v2, {sX}, 0 offen offset:256")
        A("K2_NOXW:")
    A(f"""    ; linear-map weights as MFMA A fragments (kept in registers), radial weights as an f32 table
    v_bfe_u32 v2, {vL}, 3, 2
    s_and_b32 {sT}, {sWave}, 3
    v_xor_b32 v2, {sT}, v2
    v_and_b32 v3, 3, {vL}
    v_lshlrev_b32 v3, 3, v3
    v_lshl_add_u32 v3, v2, 5, v3
    v_bfe_u32 v2, {vL}, 2, 2
    v_lshl_add_u32 v3, v2, 7, v3
    v_lshrrev_b32 v2, 4, {vL}
    v_lshl_add_u32 v3, v2, 10, v3""")
    for f in range(10):
        for u in range(2):
            A(f"    ds_read_b64_tr_b16 v[{WW+4*f+2*u}:{WW+4*f+2*u+1}], v3 offset:{f*4096+u*512}")
    A(f"""    s_cmp_lt_u32 {sWave}, 10
    s_cbranch_scc1 K2_NOW
    s_sub_u32 {sT}, {sWave}, 10
    s_min_u32 {sT2}, {sT}, 4
    s_cmp_eq_u32 {sT}, 5
    s_cselect_b32 {sRem}, 0x80000000, 0
    s_lshl_b32 {sT2}, {sT2}, 7
    s_add_u32 {sT2}, {sT2}, {RADL}
    v_lshl_add_u32 v2, {vL}, 1, {sT2}""")
    for d in range(4):
        A(f"    ds_read_u16 v{P+16+d}, v2 offset:{640*d}")
    A(f"""    s_lshl_b32 {sT}, {sT}, 7
    s_add_u32 {sT}, {sT}, {WZL}
    v_and_b32 v2, 7, {vL}
    v_mul_u32_u24 v2, 768, v2
    v_lshrrev_b32 v3, 3, {vL}
    v_lshlrev_b32 v3, 4, v3
    v_add3_u32 v2, v2, v3, {sT}
    s_waitcnt lgkmcnt(0)""")
    for d in range(4):
        A(f"    v_lshlrev_b32 v{P+16+d}, 16, v{P+16+d}")
        A(f"    v_xor_b32 v{P+16+d}, {sRem}, v{P+16+d}")
    A(f"""    ds_write_b128 v2, v[{P+16}:{P+19}]
K2_NOW:
    v_mov_b32 v{P+13}, 1
    s_mov_b32 {sT}, {CNTL}
    v_lshl_add_u32 v{P+14}, {vL}, 2, {sT}
    s_waitcnt vmcnt(4)
    ;@STAMP 3""")
    for i in range(4):
        A(f"    s_mov_b64 exec, s[{MASK+2*i}:{MASK+2*i+1}]")
        A(f"    v_lshl_add_u32 v{80+i}, v{80+i}, 2, {sT}")
        A(f"    ds_add_rtn_u32 v{84+i}, v{80+i}, v{P+13}")
    A(f"""    s_mov_b64 exec, -1
    v_lshrrev_b32 v{P}, 4, {vL}            ; g
    v_lshlrev_b32 {vZw}, 9, v{P}
    v_lshlrev_b32 v{P}, 4, v{P}
    v_add_u32 v{P}, {RECL}, v{P}           ; REC + g*16
    v_and_b32 v{P+1}, 3, {vL}              ; d
    v_lshl_add_u32 {vA}, v{P+1}, 1, v{P}
    v_add_u32 {vS}, 14, v{P}
    v_bfe_u32 v{P+1}, {vL}, 2, 2
    v_lshl_add_u32 {vY}, v{P+1}, 1, v{P}
    v_add_u32 {vY}, 6, {vY}
    v_and_b32 {vCol}, 15, {vL}
    v_lshlrev_b32 {vCol}, 4, {vCol}
    v_add_u32 {vZw}, {vZw}, {vCol}         ; j*512 + n*16
    s_mov_b32 {sPos}, 0
    s_waitcnt lgkmcnt(0)
    s_barrier
    ;@STAMP 4
    ds_read_b32 v{P}, v{P+14}
    v_mov_b32 v{P+4}, {QW}
    v_mov_b32 v{P+5}, 16
    v_mov_b32 v{vZero+3}, 0x3fff0000
    s_mov_b64 exec, 1
    ds_write_b32 v{P+4}, v{P+5}
    s_mov_b64 exec, -1
    s_waitcnt lgkmcnt(1)
    v_add_u32 v{P+1}, 3, v{P}
    v_and_b32 v{P+1}, -4, v{P+1}
    v_mov_b32 v{P+2}, v{P+1}""")
    dpp_scan(f"v{P+2}")
    A(f"""    v_sub_u32 v{P+3}, v{P+2}, v{P}
    v_sub_u32 v{P+2}, v{P+2}, v{P+1}       ; base
    v_sub_u32 v{P}, v{P+1}, v{P}           ; padding""")
    for i in range(4):
        A(f"    ds_bpermute_b32 v{80+i}, v{80+i}, v{P+3}")
    A(f"""    s_mov_b32 {sT}, {RECL}
    v_cmp_lt_u32 vcc, {sWave}, v{P}
    v_add_u32 v{P+3}, {sWave}, v{P+2}
    v_lshl_add_u32 v{P+3}, v{P+3}, 4, {sT}
    v_lshl_or_b32 {vBP}, v{P+1}, 16, v{P+2}
    s_mov_b64 exec, vcc
    ds_write_b128 v{P+3}, v[{vZero}:{vZero+3}]
    s_mov_b64 exec, -1
    s_cmp_eq_u64 s[{MASK}:{MASK+1}], 0
    s_cbranch_scc1 K2_NOSCAT
    s_waitcnt lgkmcnt(0)""")
    for i in range(4):
        A(f"    v_add_u32 v{80+i}, v{80+i}, v{84+i}")
        A(f"    v_lshl_add_u32 v{80+i}, v{80+i}, 4, {sT}")
    for i in range(4):
        A(f"    s_mov_b64 exec, s[{MASK+2*i}:{MASK+2*i+1}]")
        A(f"    s_waitcnt vmcnt({3-i})")
        A(f"    ds_write_b128 v{80+i}, v[{RAW+4*i}:{RAW+4*i+3}]")
    A(f"""    s_mov_b64 exec, -1
K2_NOSCAT:
    s_mov_b32 {sItem}, {sWave}
    s_mov_b32 {sH}, -1
    s_mov_b32 {sGC}, {QW+4}
    s_waitcnt lgkmcnt(0)
    s_barrier
    ;@STAMP 5
K2_ITEM:
    v_mov_b32 v{TM}, {QW}
    v_mov_b32 v{TM+1}, 1
    v_writelane_b32 v{TM}, {sGC}, 1
    s_mov_b64 exec, 3
    ds_add_rtn_u32 {vItem}, v{TM}, v{TM+1}
    s_mov_b64 exec, -1
    s_cmp_ge_u32 {sItem}, {sNN2}
    s_cbranch_scc1 K2_DONE
    s_cmp_ge_u32 {sItem}, {sNN}
    s_cselect_b32 {sT}, 1, 0
    s_cselect_b32 {sT2}, {sNN}, 0
    s_sub_u32 {sNode}, {sItem}, {sT2}
    s_sub_u32 {sNode}, {sNode}, 1
    s_cselect_b32 {sNode}, {sNL}, {sNode}
    s_lshr_b32 {sGC}, {sNode}, 4
    s_lshl2_add_u32 {sGC}, {sGC}, {CNTL+240}
    s_cmp_eq_u32 {sT}, {sH}
    v_readlane_b32 {sBP}, {vBP}, {sNode}
    s_cbranch_scc1 K2_SAMEH
    s_mov_b32 {sH}, {sT}
    ;@STAMP 6
    s_lshl_b32 {sSoff}, {sH}, 8
    v_mbcnt_lo_u32_b32 v{TM+2}, -1, 0
    s_mov_b32 {sT2}, {hex(lut(VAR,0))}
    s_cmov_b32 {sT2}, {hex(lut(VAR,1))}
    v_mbcnt_hi_u32_b32 v{TM+2}, -1, v{TM+2}
    v_and_b32 v{TM+3}, 0x70, {vCol}
    v_lshrrev_b32 v{TM+2}, 3, v{TM+2}
    v_lshlrev_b32 v{TM+2}, 2, v{TM+2}
    v_bfe_u32 {vWz}, {sT2}, v{TM+2}, 4
    v_lshl_add_u32 {vWz}, {vWz}, 7, v{TM+3}
    v_add_u32 {vWz}, {WZL}, {vWz}
K2_SAMEH:
    s_lshr_b32 {sRem}, {sBP}, 16
    s_cbranch_scc0 K2_EMPTY
    s_and_b32 {sT2}, {sRem}, 4
    s_cselect_b32 {sAm}, 0, -1
    s_add_u32 {sRem}, {sRem}, {sT2}
    s_and_b32 {sT}, {sBP}, 0xffff
    s_sub_u32 {sT}, {sT}, {sT2}
    s_lshl_b32 {sT}, {sT}, 4
    s_sub_u32 {sDelta}, {sT}, {sPos}
    s_mov_b32 {sPos}, {sT}
    s_and_b32 {sT}, {sRem}, 31
    s_cmp_eq_u32 {sT}, 8
    s_cbranch_scc1 K2_F1
    s_cmp_eq_u32 {sT}, 16
    s_cbranch_scc1 K2_F2
    s_cmp_eq_u32 {sT}, 24
    s_cbranch_scc1 K2_F3""")
    for nq in (4, 1, 2, 3):
        A(f"K2_F{nq}:")
        kstep(nq, True)
        A(f"    s_movk_i32 {sDelta}, {nq*128}")
        A(f"    s_sub_u32 {sRem}, {sRem}, {nq*8}")
        A(f"    s_cmp_eq_u32 {sRem}, 0")
        A(f"    s_cbranch_scc1 K2_EPI")
        if nq != 3:
            A(f"    s_branch K2_LOOP")
    A("K2_LOOP:")
    A(f"    s_add_u32 {sPos}, {sPos}, {sDelta}")
    kstep(4, False)
    A(f"""    s_movk_i32 {sDelta}, 512
    s_sub_u32 {sRem}, {sRem}, 32
    s_cmp_eq_u32 {sRem}, 0
    s_cbranch_scc0 K2_LOOP
K2_EPI:""")
    for t in range(8):
        A(f"    ds_read_b128 v[{RAW+4*t}:{RAW+4*t+3}], {vWz} offset:{768*t}")
    def zaddr():
        A(f"""    s_lshl_b32 {sT}, {sNode}, 11
    s_and_b32 {sT2}, {sNode}, 7
    s_lshl_b32 {sT2}, {sT2}, 5
    s_or_b32 {sT}, {sT}, {sT2}
    s_or_b32 {sT}, {sT}, {sSoff}
    v_xor_b32 v{TM}, {sT}, {vZw}""")
    zaddr()
    A(f"""    v_readfirstlane_b32 {sItem}, {vItem}
    s_cmp_eq_u32 {sR0}, 0""")
    for q in range(4):
        A(f"    s_waitcnt lgkmcnt({6-2*q})")
        for r in range(4):
            for t in (2*q, 2*q+1):
                op = "v_mul_f32" if r == 0 else "v_fmac_f32"
                A(f"    {op} v{BT+t}, v{RAW+4*t+r}, v{ACC+4*t+r}")
    A("    s_cbranch_scc0 K2_ACC")
    A("K2_NOACC:")
    for q in range(4):
        A(f"    v_cvt_pk_bf16_f32 v{AF+q}, v{BT+2*q}, v{BT+2*q+1}")
    A(f"""    ds_write_b128 v{TM}, v[{AF}:{AF+3}]
    s_branch K2_ITEM
K2_ACC:
    ds_read_b128 v[{AF}:{AF+3}], v{TM}
    s_waitcnt lgkmcnt(0)""")
    for q in range(4):
        A(f"    v_lshlrev_b32 v{TM+1}, 16, v{AF+q}")
        A(f"    v_and_b32 v{TM+2}, 0xffff0000, v{AF+q}")
        A(f"    v_add_f32 v{BT+2*q}, v{BT+2*q}, v{TM+1}")
        A(f"    v_add_f32 v{BT+2*q+1}, v{BT+2*q+1}, v{TM+2}")
    A(f"""    s_branch K2_NOACC
K2_EMPTY:
    s_waitcnt lgkmcnt(0)
    v_readfirstlane_b32 {sItem}, {vItem}
    s_cmp_eq_u32 {sR0}, 0
    s_cbranch_scc0 K2_ITEM""")
    zaddr()
    A(f"""    v_mov_b64 v[{AF}:{AF+1}], 0
    v_mov_b64 v[{AF+2}:{AF+3}], 0
    ds_write_b128 v{TM}, v[{AF}:{AF+3}]
    s_branch K2_ITEM
K2_DONE:
    ;@STAMP 7
    s_add_u32 {sF0}, {sF0}, {RND}
    s_add_u32 {sR0}, {sR0}, {RND}
    s_cmp_lt_u32 {sR0}, {sTot}
    v_mbcnt_lo_u32_b32 v0, -1, 0
    v_mbcnt_hi_u32_b32 v0, -1, v0          ; lane
    s_waitcnt vmcnt(0) lgkmcnt(0)
    s_cbranch_scc0 K2_LAST
    s_barrier
    s_branch K2_ROUND
K2_LAST:
    s_and_b32 {sT}, {sWave}, 12
    s_lshl_b32 {sNode}, {sT}, 2
    s_cmp_ge_u32 {sNode}, {sNN}
    s_cbranch_scc1 K2_END
    s_add_u32 {sT}, {sT}, {CNTL+240}
    v_mov_b32 v8, {sT}
    s_sub_u32 {sRem}, {sNN}, {sNode}
    s_min_u32 {sRem}, {sRem}, 16
    s_lshl_b32 {sRem}, {sRem}, 1
    v_and_b32 v2, 15, v0
    v_add_u32 v2, {sNode}, v2
    v_lshrrev_b32 v3, 4, v0                ; g
    v_and_b32 v4, 7, v2
    v_lshlrev_b32 v4, 1, v4
    v_xor_b32 v4, v4, v3
    v_lshlrev_b32 v4, 4, v4
    v_lshl_add_u32 v4, v2, 11, v4
    v_xor_b32 v5, 64, v4
    v_xor_b32 v6, 128, v4
    v_xor_b32 v7, 192, v4
K2_WAITG:
    ds_read_b32 v9, v8
    s_waitcnt lgkmcnt(0)
    v_readfirstlane_b32 {sT}, v9
    s_cmp_lt_u32 {sT}, {sRem}
    s_cbranch_scc1 K2_WAITG
    ;@STAMP 8""")
    terms = [(0, 0, 0), (1, 4, 2), (2, 8, 2), (3, 12, 2),
             (0, 5, 1), (1, 1, 3), (2, 2, 3), (3, 3, 3),
             (0, 10, 1), (1, 11, 4), (2, 13, 4), (3, 6, 4),
             (0, 15, 1), (1, 14, 4), (2, 7, 4), (3, 9, 4)]
    seq = [(c, jk, blk, s) for s in range(2) for (c, jk, blk) in terms]
    seq = seq[:25] + [seq[28]] + seq[25:28] + seq[29:]
    NS = len(seq)
    OUT = 8
    ZR = 64
    NBUF = 14
    started = set()
    def zread(k):
        c, zb, blk, s = seq[k]
        r = ZR + 4 * (k % NBUF)
        A(f"    ds_read_b128 v[{r}:{r+3}], v{4+(zb&1)*2+s} offset:{(zb>>1)*256}")
    for k in range(NBUF):
        zread(k)
    A(f"""    s_and_b32 {sT}, {sWave}, 3
    v_add_u32 v1, {sN0}, v2
    v_lshlrev_b32 v1, 9, v1
    v_lshl_add_u32 v1, v3, 3, v1
    s_lshl_b32 {sT}, {sT}, 5
    v_add_u32 v1, {sT}, v1""")
    for k in range(NS):
        c, zb, blk, s = seq[k]
        issued = min(NS, k + NBUF)
        A(f"    s_waitcnt lgkmcnt({issued-k-1})")
        r = ZR + 4 * (k % NBUF)
        w = WW + 4 * (blk * 2 + s)
        cc = f"v[{OUT+4*c}:{OUT+4*c+3}]" if c in started else "0"
        started.add(c)
        A(f"    v_mfma_f32_16x16x32_bf16 v[{OUT+4*c}:{OUT+4*c+3}], v[{w}:{w+3}], v[{r}:{r+3}], {cc}")
        if k + NBUF < NS:
            zread(k + NBUF)
    G = 120; O = 24
    A(f"""    v_cmp_gt_u32 vcc, {sNN}, v2
    s_mov_b32 {sT}, 0xbfb8aa3b""")
    for r in range(4):
        A(f"    v_mul_f32 v{G+r}, {sT}, v{OUT+r}")
    for r in range(4):
        A(f"    v_exp_f32 v{G+r}, v{G+r}")
    A("    s_nop 0")
    for r in range(4):
        A(f"    v_add_f32 v{G+r}, 1.0, v{G+r}")
    for r in range(4):
        A(f"    v_rcp_f32 v{G+r}, v{G+r}")
    A("    s_and_b64 exec, exec, vcc")
    A(f"    v_cvt_pk_bf16_f32 v{O}, v{OUT}, v{OUT+1}")
    A(f"    v_cvt_pk_bf16_f32 v{O+1}, v{OUT+2}, v{OUT+3}")
    A(f"    global_store_dwordx2 v1, v[{O}:{O+1}], s[6:7] {OPOL}")
    for c in range(1, 4):
        for r in range(4):
            A(f"    v_mul_f32 v{OUT+4*c+r}, v{OUT+4*c+r}, v{G+r}")
        A(f"    v_cvt_pk_bf16_f32 v{O+2*c}, v{OUT+4*c}, v{OUT+4*c+1}")
        A(f"    v_cvt_pk_bf16_f32 v{O+1+2*c}, v{OUT+4*c+2}, v{OUT+4*c+3}")
        A(f"    global_store_dwordx2 v1, v[{O+2*c}:{O+1+2*c}], s[6:7] offset:{128*c} {OPOL}")
    if STAMPS:
        A(f"""    ;@STAMP 9
    s_waitcnt vmcnt(0)
    ;@STAMP 10
    ;@STAMPOUT 1 {sWS} {sWave}""")
    A("""K2_END:
    s_endpgm""")

def kd(name, vgpr, sgpr):
    A(".p2align 6")
    A(f""".amdhsa_kernel {name}
  .amdhsa_next_free_vgpr {vgpr}
  .amdhsa_next_free_sgpr {sgpr}
  .amdhsa_accum_offset {(vgpr+3)//4*4}
  .amdhsa_group_segment_fixed_size 0
  .amdhsa_kernarg_size 96
  .amdhsa_user_sgpr_count 2
  .amdhsa_user_sgpr_kernarg_segment_ptr 1
  .amdhsa_system_sgpr_workgroup_id_x 1
  .amdhsa_float_denorm_mode_32 3
.end_amdhsa_kernel""")

A(HEADER)
A(f"; @launch kernel=bin_kernel grid=(256,1,1) block=({K1_THR},1,1) lds={K1_LDS}")
A(f"; @launch kernel=agg_kernel grid=(256,1,1) block=(1024,1,1) lds={K2_LDS}")
A('.amdgcn_target "amdgcn-amd-amdhsa--gfx950"')
A(".text")
A(".globl bin_kernel")
A(".globl agg_kernel")
gen_k1()
gen_k2()
A('.section .rodata,"a"')
kd("bin_kernel", 64, 80 if STAMPS else 32)
kd("agg_kernel", 128, 80 if STAMPS else 56)
out = sys.argv[1] if len(sys.argv) > 1 else "standalone__tensor_product_equiv_equiformer__graph.s"
open(out, "w").write("\n".join(L) + "\n")
print("wrote", out, len(L), "lines")
```

```python
import sys

N = 12500; E = 800000; CHUNK = 3200; NCH = 250; NB = 256; NPB = 49
REC_OFF = 0
BYT_OFF = 256 * CHUNK * 16
TAB_OFF = BYT_OFF + 256 * CHUNK + 8192

L = []
def A(s=""):
    for ln in s.split("\n"):
        t = ln.strip()
        if t.startswith(";@STAMPOUT"):
            _, k, ws, wv = t.split()
            stamp_out(int(k), ws, wv)
        elif t.startswith(";@CLK"):
            if STAMPS:
                L.append("    s_waitcnt lgkmcnt(0)\n    s_memtime s[62:63]\n    s_waitcnt lgkmcnt(0)")
                L.append("    s_sub_u32 s79, s62, s79" if t.split()[1] == "1" else "    s_mov_b32 s79, s62")
        elif t.startswith(";@STAMP"):
            stamp(int(t.split()[1]))
        else:
            L.append(ln)

HEADER = """; Kernarg layout for this problem (96 bytes, ptrs only, base s[0:1]):
; destination node, aggregates with MFMA, applies the radial weights, the two linear maps and the gate."""

import os
STAMPS = os.environ.get("STAMPS") == "1"
STAMP_OFF = 32 << 20
def opt(name, dflt):
    return os.environ.get(name, dflt)
NT = opt("NT", "nt"); SC = opt("SC", "sc1"); PF = int(opt("PF", "0")); XW = int(opt("XW", "0")); OPOL = opt("OPOL", ""); WWARM = int(opt("WWARM", "1")); PRIO = int(opt("PRIO", "1")); NE = int(opt("NE", "4")); SPF = int(opt("SPF", "1")); K16 = int(opt("K16", "1")); RPOL = opt("RPOL", "")
def stamp(i):
    if STAMPS:
        A(f"""    s_waitcnt lgkmcnt(0)
    s_memrealtime s[62:63]
    s_waitcnt lgkmcnt(0)
    s_mov_b32 s{64+i}, s62""")
def stamp_out(kidx, ws, wavereg):
    if STAMPS:
        A(f"""    s_mov_b64 exec, 1
    s_lshl_b32 s62, s2, 4
    s_add_u32 s62, s62, {wavereg}
    s_lshl_b32 s62, s62, 6
    s_add_u32 s62, s62, {STAMP_OFF + kidx*(1<<20)}
    v_mov_b32 v60, s62""")
        for i in range(16):
            A(f"    v_mov_b32 v61, s{64+i}")
            A(f"    global_store_dword v60, v61, {ws} offset:{4*i}")

def dpp_scan(v):
    for sh in (1, 2, 4, 8):
        A("    s_nop 1")
        A(f"    v_add_u32_dpp {v}, {v}, {v} row_shr:{sh} row_mask:0xf bank_mask:0xf")
    A("    s_nop 1")
    A(f"    v_add_u32_dpp {v}, {v}, {v} row_bcast:15 row_mask:0xa bank_mask:0xf")
    A("    s_nop 1")
    A(f"    v_add_u32_dpp {v}, {v}, {v} row_bcast:31 row_mask:0xc bank_mask:0xf")

K1_STG = 0; K1_BYT = 51200; K1_CNT = 54400; K1_BASE = 55424; K1_LDS = 56448
K1_THR = 1024 if PF else 832

def gen_k1():
    A(".p2align 8")
    A(".type bin_kernel,@function")
    A("bin_kernel:")
    A(f"""    s_cmp_ge_u32 s2, 256
    s_cbranch_scc1 K1_END
    s_load_dwordx4 s[4:7], s[0:1], 8
    s_load_dwordx4 s[8:11], s[0:1], 24
    s_load_dwordx2 s[18:19], s[0:1], 88    ; ws
    v_readfirstlane_b32 s23, v0""")
    if PF:
        A("""    s_cmp_ge_u32 s23, 832
    s_cbranch_scc1 K1_PF""")
    A(f"""    s_cmp_ge_u32 s2, {NCH}
    s_cbranch_scc1 {'K1_W' if WWARM else 'K1_END'}
    ;@STAMP 0
    s_mul_i32 s3, s2, {CHUNK//4}
    v_add_u32 v1, s3, v0
    v_lshlrev_b32 v2, 4, v1
    v_lshlrev_b32 v3, 5, v1
    v_mul_u32_u24 v28, 24, v1
    v_and_b32 v29, 255, v0
    v_lshlrev_b32 v29, 2, v29
    v_mov_b32 v30, 0
    ds_write_b32 v29, v30 offset:{K1_CNT}
    v_cmp_gt_u32 vcc, {CHUNK//4}, v0
    s_mov_b64 s[20:21], vcc
    s_mov_b64 exec, vcc
    s_waitcnt lgkmcnt(0)
    global_load_dwordx4 v[4:7], v2, s[10:11] {NT}           ; dst
    s_barrier
    global_load_dwordx4 v[8:11], v2, s[8:9] {NT}            ; src
    global_load_dwordx4 v[12:15], v3, s[6:7] {NT}           ; e_attr
    global_load_dwordx4 v[16:19], v3, s[6:7] offset:16 {NT}
    global_load_dwordx3 v[20:22], v28, s[4:5] {NT}          ; rhat
    global_load_dwordx3 v[24:26], v28, s[4:5] offset:12 {NT}
    v_mov_b32 v30, 1
    s_movk_i32 s22, -{NPB}
    s_and_b32 s24, s2, 7
    s_lshl_b32 s24, s24, 5
    s_lshr_b32 s25, s2, 3
    s_add_u32 s26, s24, s25
    s_waitcnt vmcnt(5)
    ;@STAMP 1""")
    for i in range(4):
        A(f"    v_mul_u32_u24 v{32+i}, 21400, v{4+i}")
    for i in range(4):
        A(f"    v_lshrrev_b32 v{32+i}, 20, v{32+i}          ; bucket")
    for i in range(4):
        A(f"    v_mad_i32_i24 v{4+i}, v{32+i}, s22, v{4+i}")
    for i in range(4):
        A(f"    v_lshlrev_b32 v{32+i}, 2, v{32+i}")
        A(f"    ds_add_rtn_u32 v{36+i}, v{32+i}, v30 offset:{K1_CNT}")
    A(f"""    s_mov_b64 exec, -1
    v_and_b32 v1, 63, v0
    v_lshlrev_b32 v2, 4, v1
    s_waitcnt lgkmcnt(0)
    s_barrier
    ;@STAMP 2
    ds_read_b128 v[40:43], v2 offset:{K1_CNT}
    s_waitcnt lgkmcnt(0)
    v_add_u32 v45, v40, v41
    v_add_u32 v46, v45, v42
    v_add_u32 v47, v46, v43
    v_mov_b32 v48, v47""")
    dpp_scan("v48")
    A(f"""    v_sub_u32 v52, v48, v47
    v_add_u32 v53, v52, v40
    v_add_u32 v54, v52, v45
    v_add_u32 v55, v52, v46
    ds_write_b128 v2, v[52:55] offset:{K1_BASE}
    s_mov_b64 exec, s[20:21]
    s_waitcnt lgkmcnt(0)""")
    for i in range(4):
        A(f"    ds_read_b32 v{32+i}, v{32+i} offset:{K1_BASE}")
    A(f"""    s_cmp_lt_u32 s23, 768
    s_cbranch_scc1 K1_NOTAB
    s_mov_b64 exec, -1
    s_lshl_b32 s24, s26, 2
    s_add_u32 s24, s24, {TAB_OFF}
    v_lshlrev_b32 v44, 12, v1
    v_add_u32 v44, s24, v44
    s_mul_i32 s24, s26, {CHUNK}""")
    for i in range(4):
        A(f"    v_lshlrev_b32 v{56+i}, 20, v{40+i}")
        A(f"    v_add3_u32 v{56+i}, v{56+i}, v{52+i}, s24")
        A(f"    global_store_dword v44, v{56+i}, s[18:19] offset:{1024*i}")
    A(f"""    s_mov_b64 exec, s[20:21]
    s_waitcnt vmcnt(4)
    s_branch K1_TABDONE
K1_NOTAB:
    s_waitcnt vmcnt(0)
K1_TABDONE:
    ;@STAMP 3
    s_mov_b32 s24, 0x05040100
    v_alignbit_b32 v28, v22, v21, 16
    v_alignbit_b32 v29, v9, v22, 16
    v_perm_b32 v21, v8, v21, s24
    v_alignbit_b32 v30, v26, v25, 16
    v_alignbit_b32 v31, v11, v26, 16
    v_perm_b32 v25, v10, v25, s24
    s_waitcnt lgkmcnt(0)""")
    ypair = [20, 28, 24, 30]
    for i in range(4):
        A(f"    v_add_u32 v{32+i}, v{32+i}, v{36+i}")
        A(f"    v_lshlrev_b32 v{36+i}, 4, v{32+i}")
        A(f"    ds_write2_b64 v{36+i}, v[{12+2*i}:{13+2*i}], v[{ypair[i]}:{ypair[i]+1}] offset0:0 offset1:1")
        A(f"    ds_write_b8 v{32+i}, v{4+i} offset:{K1_BYT}")
    A(f"""    v_lshlrev_b32 v2, 4, v0
    s_mul_i32 s24, s26, {CHUNK*16}
    s_mul_i32 s25, s26, {CHUNK}
    s_add_u32 s25, s25, {BYT_OFF}
    v_add_u32 v3, s24, v2
    v_add_u32 v4, {1*12800}, v3
    v_add_u32 v5, {2*12800}, v3
    v_add_u32 v6, {3*12800}, v3
    v_add_u32 v7, s25, v2
    s_waitcnt lgkmcnt(0)
    s_barrier
    ;@STAMP 4""")
    for i in range(4):
        A(f"    ds_read_b128 v[{8+4*i}:{11+4*i}], v2 offset:{12800*i}")
    for i in range(4):
        A(f"    s_waitcnt lgkmcnt({3-i})")
        A(f"    global_store_dwordx4 v{3+i}, v[{8+4*i}:{11+4*i}], s[18:19] {SC}")
    A(f"""    v_cmp_gt_u32 vcc, {CHUNK//16}, v0
    s_and_b64 exec, exec, vcc
    s_cbranch_execz K1_NOBYT
    ds_read_b128 v[24:27], v2 offset:{K1_BYT}
    s_waitcnt lgkmcnt(0)
    global_store_dwordx4 v7, v[24:27], s[18:19] {SC}
K1_NOBYT:""")
    if PF == 5: A("    s_barrier")
    if STAMPS:
        A("""    ;@STAMP 5
    s_waitcnt vmcnt(0)
    ;@STAMP 6
    s_lshr_b32 s23, s23, 6
    ;@STAMPOUT 0 s[18:19] s23""")
    A("    s_endpgm")
    if WWARM:
        A("""K1_W:
    s_load_dwordx4 s[12:15], s[0:1], 40
    s_load_dwordx2 s[16:17], s[0:1], 56    ; w_si1
    s_cmp_ge_u32 s23, 192
    s_cbranch_scc1 K1_END
    v_lshlrev_b32 v1, 7, v0
    v_min_u32 v2, 16256, v1
    v_min_u32 v3, 2432, v1
    s_waitcnt lgkmcnt(0)
    global_load_dword v4, v1, s[16:17]
    global_load_dword v5, v2, s[14:15]
    global_load_dword v6, v3, s[12:13]
    s_endpgm""")
    if PF:
        A(f"""K1_PF:
    s_load_dwordx2 s[12:13], s[0:1], 0     ; x
    s_mov_b32 s14, {N*512}
    s_mov_b32 s15, 0x00020000
    v_subrev_u32 v1, 832, v0               ; 0..191
    v_lshrrev_b32 v2, 1, v1
    v_and_b32 v1, 1, v1
    v_lshlrev_b32 v1, 7, v1
    v_lshl_add_u32 v1, v2, 9, v1
    s_lshr_b32 s3, s2, 3
    s_mul_i32 s3, s3, {391*512}
    s_mul_i32 s16, s2, {49*512}
    s_add_u32 s16, s16, 256
    v_add_u32 v3, s3, v1
    v_cmp_gt_u32 vcc, {NPB}, v2
    v_add_u32 v8, s16, v1
    v_mov_b32 v9, 0x7fffff00
    v_cndmask_b32 v8, v9, v8, vcc
    v_cmp_gt_u32 vcc, {391-4*96}, v2""")
        for i in range(1, 5):
            A(f"    v_add_u32 v{3+i}, {96*512*i}, v3")
        A("""    v_cndmask_b32 v7, v9, v7, vcc
    s_waitcnt lgkmcnt(0)""")
        if PF >= 3:
            A(f"""    v_subrev_u32 v1, 832, v0
    s_mul_i32 s16, s2, {49*512}
    v_cmp_gt_u32 vcc, 4, v1
    v_lshl_add_u32 v3, v1, 7, s16
    v_add_u32 v4, {192*128}, v3
    v_cndmask_b32 v4, v9, v4, vcc""")
        nb = {1: 2, 2: 1, 3: 2, 4: 1, 5: 3}[PF]
        for i in range(nb): A("    s_barrier")
        if PF == 5: A("    s_barrier")
        for i in range(6 if PF < 3 else 2):
            A(f"    buffer_load_dword v{10+i}, v{3+i}, s[12:15], 0 offen")
        for i in range(2 - nb): A("    s_barrier")
        if PF != 5: A("    s_barrier")
        A("    s_waitcnt vmcnt(0)")
        if STAMPS:
            A("""    ;@STAMP 0
    ;@STAMP 1
    ;@STAMP 2
    ;@STAMP 3
    ;@STAMP 4
    ;@STAMP 5
    ;@STAMP 6
    s_lshr_b32 s23, s23, 6
    ;@STAMPOUT 0 s[18:19] s23""")
    A("""K1_END:
    s_endpgm""")

ZS = 2048
ZEND = NPB * ZS
WZL = ZEND
CNTL = WZL + 6144
assert CNTL % 256 == 0
QW = CNTL + 256
RECL = QW + 16
K2_LDS = 163840
RND = (K2_LDS - RECL) // 16 - NPB * 3
SCR = RECL
WST = 0
RADL = 40960

vA, vY, vS, vCol, vZw, vWz, vBP, vItem = [f"v{i}" for i in range(8)]
TM = 8; AF = 12; BT = 16; WW = 24; RAW = 64; ACC = 96
sX = "s[8:11]"
sWS = "s[12:13]"
sN0 = "s14"; sNN = "s15"; sWave = "s16"; sF0 = "s17"; sTot = "s18"; sPos = "s19"; sDelta = "s20"
sItem = "s21"; sH = "s22"; sNode = "s23"; sBP = "s24"; sRem = "s25"; sSelLo = "s26"; sSelHi = "s27"
sT = "s28"; sT2 = "s29"; sNN2 = "s30"; sSoff = "s31"; sB = "s3"; sR0 = "s50"; sLim = "s51"; sAm = "s52"; sGC = "s53"; sNL = "s54"; sSc = "s55"; sPf = "s56"
MASK = 32
sJM = "s[40:41]"
sBYT = "s[42:43]"
sRAD = "s[44:45]"; sW0 = "s[46:47]"; sW1 = "s[48:49]"
BLK = [0, 5, 6, 7, 2, 1, 10, 9, 3, 10, 1, 8, 4, 9, 8, 1]
VAR = [0, 3, 3, 3, 2, 1, 4, 5, 2, 5, 1, 4, 2, 4, 5, 1]
def lut(tab, h):
    v = 0
    for j in range(4):
        for b in range(2):
            v |= tab[4*j + 2*h + b] << (4 * (2*j + b))
    return v

def kstep(nq, first):
    n = 2 * nq
    YR = [AF, AF+1, AF+2, AF+3, TM, TM+1, TM+2, TM+3]
    sreg = lambda i: (TM if (first and i == 0) else RAW + 4 * i)
    A(f"    v_add_u32 {vS}, {sDelta}, {vS}")
    A(f"    v_add_u32 {vA}, {sDelta}, {vA}")
    for i in range(n):
        A(f"    ds_read_u16 v{sreg(i)}, {vS} offset:{64*i}")
    na = min(n, 6)
    for i in range(na):
        A(f"    ds_read_u16_d16_hi v{BT+i}, {vA} offset:{64*i}")
    A(f"    v_add_u32 {vY}, {sDelta}, {vY}")
    if first:
        A(f"    v_mov_b64 v[{RAW}:{RAW+1}], 0")
        A(f"    v_mov_b64 v[{RAW+2}:{RAW+3}], 0")
        A(f"    s_cmp_eq_u32 {sAm}, 0")
    for i in range(n):
        if i % 2 == 0:
            A(f"    s_waitcnt lgkmcnt({n-2-i+na})")
        if first and i == 0:
            A(f"    s_cbranch_scc1 K2_SK{nq}")
        A(f"    v_lshl_add_u32 v{sreg(i)}, v{sreg(i)}, 9, {vCol}")
        A(f"    buffer_load_dwordx4 v[{RAW+4*i}:{RAW+4*i+3}], v{sreg(i)}, {sX}, {sSoff} offen")
        if first and i == 0:
            A(f"K2_SK{nq}:")
    for i in range(na, n):
        A(f"    ds_read_u16_d16_hi v{BT+i}, {vA} offset:{64*i}")
    A(f"    s_mov_b64 exec, {sJM}")
    for i in range(n):
        A(f"    ds_read_u16_d16_hi v{YR[i]}, {vY} offset:{64*i}")
    A("    s_waitcnt lgkmcnt(0)")
    for i in range(n):
        A(f"    v_mul_f32 v{BT+i}, v{BT+i}, v{YR[i]}")
    A(f"    s_mov_b64 exec, -1")
    if first:
        A(f"    v_and_b32 v{BT}, {sAm}, v{BT}")
        if SPF:
            A(f"    s_buffer_load_dwordx2 s[58:59], {sX}, {sPf} offset:{256+60}")
            A(f"    s_buffer_load_dwordx2 s[58:59], {sX}, {sPf} offset:{384+60}")
    for q in range(nq):
        A(f"    v_cvt_pk_bf16_f32 v{AF+q}, v{BT+2*q}, v{BT+2*q+1}")
    k16 = K16 and nq <= 2
    W = 2 if k16 else 4
    q = nq
    while q < W:
        if q % 2 == 0:
            for b in (AF, BT, BT+4):
                A(f"    v_mov_b64 v[{b+q}:{b+q+1}], 0")
            q += 2
        else:
            for b in (AF, BT, BT+4):
                A(f"    v_mov_b32 v{b+q}, 0")
            q += 1
    A("    s_waitcnt vmcnt(0)")
    def perms(t):
        b = BT + 4 * (t & 1)
        sel = sSelHi if (t & 1) else sSelLo
        for q in range(nq):
            A(f"    v_perm_b32 v{b+q}, v{RAW+4*(2*q+1)+(t>>1)}, v{RAW+4*(2*q)+(t>>1)}, {sel}")
    def mfma(t):
        b = BT + 4 * (t & 1)
        c = "0" if first else f"v[{ACC+4*t}:{ACC+4*t+3}]"
        op = "v_mfma_f32_16x16x16_bf16" if k16 else "v_mfma_f32_16x16x32_bf16"
        A(f"    {op} v[{ACC+4*t}:{ACC+4*t+3}], v[{AF}:{AF+W-1}], v[{b}:{b+W-1}], {c}")
    perms(0)
    for t in range(8):
        if t < 7:
            perms(t + 1)
            if nq == 1 and t == 0:
                A("    s_nop 0")
        else:
            A("    s_nop 0")
        mfma(t)

def gen_k2():
    A(".p2align 8")
    A(".type agg_kernel,@function")
    A("agg_kernel:")
    P = 96
    vL = "v126"; vZero = 120
    A(f"""    s_cmp_ge_u32 s2, 256
    s_cbranch_scc1 K2_END
    s_load_dwordx2 {sWS}, s[0:1], 88       ; ws
    s_load_dwordx4 s[44:47], s[0:1], 40
    s_load_dwordx2 {sW1}, s[0:1], 56       ; w_si1
    s_load_dwordx2 s[8:9], s[0:1], 0       ; x
    s_load_dwordx2 s[6:7], s[0:1], 72      ; out
    ;@STAMP 0
    s_and_b32 {sB}, s2, 7
    s_lshl_b32 {sB}, {sB}, 5
    s_lshr_b32 {sT}, s2, 3
    s_add_u32 {sB}, {sB}, {sT}             ; bucket
    v_lshrrev_b32 v1, 6, v0
    v_and_b32 {vL}, 63, v0                 ; lane
    v_readfirstlane_b32 {sWave}, v1
    s_mul_i32 {sN0}, {sB}, {NPB}
    s_sub_u32 {sNN}, {N}, {sN0}
    s_min_u32 {sNN}, {sNN}, {NPB}
    s_lshl_b32 {sNN2}, {sNN}, 1
    s_sub_u32 {sNL}, {sNN}, 1
    s_mov_b32 s10, {N*512}
    s_mov_b32 s11, 0x00020000
    s_mov_b32 {sSelLo}, 0x05040100
    s_mov_b32 {sSelHi}, 0x07060302
    s_mov_b32 s40, 0xfff0fff0
    s_mov_b32 s41, 0xfff0fff0
    s_lshl_b32 {sF0}, {sWave}, 8
    s_lshl_b32 {sB}, {sB}, 10
    s_add_u32 {sB}, {sB}, {TAB_OFF}
    s_mov_b32 {sR0}, 0
    s_waitcnt lgkmcnt(0)
    s_add_u32 s42, s12, {BYT_OFF}
    s_addc_u32 s43, s13, 0
K2_ROUND:
    v_lshl_add_u32 v4, {vL}, 4, {sB}
    global_load_dwordx4 v[{P}:{P+3}], v4, {sWS}
    v_mov_b64 v[{vZero}:{vZero+1}], 0
    v_mov_b64 v[{vZero+2}:{vZero+3}], 0
    s_lshl_b32 {sSc}, {sWave}, 10
    s_add_u32 {sSc}, {sSc}, {SCR}
    v_lshl_add_u32 v3, {vL}, 4, {sSc}
    ds_write_b128 v3, v[{vZero}:{vZero+3}]           ; marks
    s_mov_b32 {sT}, {CNTL}
    v_lshl_add_u32 v{P+14}, {vL}, 2, {sT}
    ds_write_b32 v{P+14}, v{vZero}
    s_sub_u32 {sT}, {sF0}, {14*256}
    s_cmp_lt_u32 {sT}, 512
    s_cbranch_scc0 K2_NODMA
    s_cmp_lg_u32 {sR0}, 0
    s_cbranch_scc1 K2_NODMA
    s_lshl_b32 {sT}, {sT}, 2               ; 0 / 1024
    v_bfe_u32 v2, {vL}, 4, 1
    s_lshr_b32 {sT2}, {sT}, 8
    v_lshl_or_b32 v2, v2, 1, {sT2}
    v_xor_b32 v2, v2, {vL}
    v_lshl_add_u32 v2, v2, 4, {sT}
    v_lshl_add_u32 v3, {vL}, 4, {sT}
    s_add_u32 m0, {sT}, {RADL}
    v_min_u32 v4, {2560-2048-16}, v3
    global_load_lds_dwordx4 v3, {sRAD}
    global_load_lds_dwordx4 v4, {sRAD} offset:2048
    s_mov_b32 m0, {sT}""")
    for k in range(6):
        if k < 4:
            if k: A(f"    s_add_u32 m0, {sT}, {4096*k}")
            A(f"    s_nop 0")
            A(f"    global_load_lds_dwordx4 v2, {sW0}")
            A(f"    global_load_lds_dwordx4 v2, {sW0} offset:2048")
        A(f"    s_add_u32 m0, {sT}, {16384+4096*k}")
        A(f"    s_nop 0")
        A(f"    global_load_lds_dwordx4 v2, {sW1}")
        A(f"    global_load_lds_dwordx4 v2, {sW1} offset:2048")
        if k < 5: A(f"    v_add_u32 v2, 4096, v2")
    A(f"""K2_NODMA:
    s_mov_b32 vcc_lo, 0x80800000
    s_mov_b32 vcc_hi, 0x80808080
    s_movk_i32 {sT2}, 256
    s_add_u32 {sLim}, {sR0}, {RND}
    s_waitcnt vmcnt(0)
    ;@STAMP 1
    v_cndmask_b32 v{P+3}, v{P+3}, v{vZero}, vcc""")
    for i in range(4):
        A(f"    v_lshrrev_b32 v{P+4+i}, 20, v{P+i}           ; count")
    A(f"""    v_add_u32 v{P+5}, v{P+5}, v{P+4}
    v_add_u32 v{P+6}, v{P+6}, v{P+5}
    v_add_u32 v{P+7}, v{P+7}, v{P+6}
    v_mov_b32 v{P+12}, v{P+7}""")
    fill = [f"    v_and_b32 v{P+i}, 0xfffff, v{P+i}" for i in range(4)]
    fill += [f"    v_add_u32 v{P+16+i}, {64*i}, {vL}" for i in range(1, 4)]
    fill += [f"    v_lshl_add_u32 v{P+13}, {vL}, 2, {sSc}"]
    v = f"v{P+12}"
    steps = [f"row_shr:{sh} row_mask:0xf" for sh in (1, 2, 4, 8)] + ["row_bcast:15 row_mask:0xa", "row_bcast:31 row_mask:0xc"]
    for k, st in enumerate(steps):
        if k < 4:
            A(fill[2*k]); A(fill[2*k+1])
        else:
            A("    s_nop 1")
        A(f"    v_add_u32_dpp {v}, {v}, {v} {st} bank_mask:0xf")
    A(f"""    s_nop 0
    v_readlane_b32 {sTot}, {v}, 63
    v_subrev_u32 v{P+12}, {sF0}, v{P+12}
    v_sub_u32 v{P+8}, v{P+12}, v{P+7}
    s_min_u32 {sLim}, {sLim}, {sTot}
    s_cmp_lt_u32 {sF0}, {sLim}
    s_cbranch_scc0 K2_NOWIN
    v_add_u32 v{P+9}, v{P+8}, v{P+4}
    v_add_u32 v{P+10}, v{P+8}, v{P+5}
    v_add_u32 v{P+11}, v{P+8}, v{P+6}""")
    for i in range(4):
        A(f"    v_sub_u32 v{P+i}, v{P+i}, v{P+8+i}")
    for i in range(5):
        A(f"    v_med3_i32 v{P+8+i}, v{P+8+i}, 0, {sT2}")
    for i in range(4):
        A(f"    v_cmp_gt_i32 s[{MASK+2*i}:{MASK+2*i+1}], v{P+9+i}, v{P+8+i}")
        A(f"    v_lshl_add_u32 v{P+4+i}, v{P+8+i}, 2, {sSc}")
    for i in range(4):
        A(f"    s_mov_b64 exec, s[{MASK+2*i}:{MASK+2*i+1}]")
        A(f"    ds_write_b32 v{P+4+i}, v{P+i}")
    A("    s_mov_b64 exec, -1")
    A("    ;@STAMP 11")
    IX = 88
    for i in range(4):
        A(f"    ds_read_b32 v{IX+i}, v{P+13} offset:{256*i}")
    A(f"    s_sub_u32 {sT}, {sLim}, {sF0}")
    pos = [vL] + [f"v{P+16+i}" for i in range(1, 4)]
    for i in range(4):
        A(f"    v_cmp_gt_u32 s[{MASK+2*i}:{MASK+2*i+1}], {sT}, {pos[i]}")
    A("    s_waitcnt lgkmcnt(0)")
    for st in steps:
        for i in range(4):
            A(f"    v_max_u32_dpp v{IX+i}, v{IX+i}, v{IX+i} {st} bank_mask:0xf")
    A(f"""    ;@STAMP 12
    v_readlane_b32 {sT}, v{IX}, 63
    v_readlane_b32 {sT2}, v{IX+1}, 63
    v_readlane_b32 {sRem}, v{IX+2}, 63
    v_add_u32 v{IX}, v{IX}, {vL}
    s_max_u32 {sT2}, {sT2}, {sT}
    s_max_u32 {sRem}, {sRem}, {sT2}
    global_load_ubyte v80, v{IX}, {sBYT} {RPOL}
    v_max_u32 v{IX+1}, {sT}, v{IX+1}
    v_max_u32 v{IX+2}, {sT2}, v{IX+2}
    v_max_u32 v{IX+3}, {sRem}, v{IX+3}""")
    for i in range(1, 4):
        A(f"    v_add_u32 v{IX+i}, v{IX+i}, {pos[i]}")
        A(f"    global_load_ubyte v{80+i}, v{IX+i}, {sBYT} {RPOL}")
    for i in range(4):
        A(f"    v_lshlrev_b32 v{IX+i}, 4, v{IX+i}")
    A(f"""    ;@STAMP 13
    s_barrier""")
    def recload(i):
        A(f"    global_load_dwordx4 v[{RAW+4*i}:{RAW+4*i+3}], v{IX+i}, {sWS} {RPOL}")
    for i in range(NE): recload(i)
    A(f"""    ;@STAMP 14
    s_branch K2_ISSUED
K2_NOWIN:""")
    for i in range(4):
        A(f"    s_mov_b64 s[{MASK+2*i}:{MASK+2*i+1}], 0")
    A(f"""    s_waitcnt lgkmcnt(0)
    s_barrier
K2_ISSUED:
    ;@STAMP 2
    s_cmp_lg_u32 {sR0}, 0
    s_cbranch_scc1 K2_NOW
    v_bfe_u32 v2, {vL}, 3, 2
    s_and_b32 {sT}, {sWave}, 3
    v_xor_b32 v2, {sT}, v2
    v_and_b32 v3, 3, {vL}
    v_lshlrev_b32 v3, 3, v3
    v_lshl_add_u32 v3, v2, 5, v3
    v_bfe_u32 v2, {vL}, 2, 2
    v_lshl_add_u32 v3, v2, 7, v3
    v_lshrrev_b32 v2, 4, {vL}
    v_lshl_add_u32 v3, v2, 10, v3""")
    for f in range(10):
        for u in range(2):
            A(f"    ds_read_b64_tr_b16 v[{WW+4*f+2*u}:{WW+4*f+2*u+1}], v3 offset:{f*4096+u*512}")
    A(f"""    s_cmp_lt_u32 {sWave}, 14
    s_cbranch_scc1 K2_NOW
    s_cmp_eq_u32 {sWave}, 15
    s_cselect_b32 {sRem}, 0x80000000, 0
    s_cselect_b32 {sT}, 384, 0
    s_movk_i32 {sT2}, 256
    s_cmovk_i32 {sT2}, 128
    v_lshl_add_u32 v2, {vL}, 1, {sT}
    v_add_u32 v3, {sT2}, v2""")
    for k in range(3):
        for d in range(4):
            A(f"    ds_read_u16 v{RAW+4*k+d}, v{2 if k < 2 else 3} offset:{RADL+640*d+(128 if k == 1 else 0)}")
    A(f"""    s_add_u32 {sT}, {sT}, {WZL}
    v_and_b32 v2, 7, {vL}
    v_mul_u32_u24 v2, 768, v2
    v_lshrrev_b32 v3, 3, {vL}
    v_lshlrev_b32 v3, 4, v3
    v_add3_u32 v2, v2, v3, {sT}
    s_waitcnt lgkmcnt(0)""")
    for k in range(3):
        for d in range(4):
            A(f"    v_lshlrev_b32 v{RAW+4*k+d}, 16, v{RAW+4*k+d}")
            if k == 2: A(f"    v_xor_b32 v{RAW+4*k+d}, {sRem}, v{RAW+4*k+d}")
        A(f"    ds_write_b128 v2, v[{RAW+4*k}:{RAW+4*k+3}] offset:{128*k}")
    A(f"""K2_NOW:
    v_mov_b32 v{P+13}, 1
    s_mov_b32 {sT}, {CNTL}
    v_lshrrev_b32 v{P}, 4, {vL}            ; g
    v_lshlrev_b32 {vZw}, 9, v{P}
    v_lshlrev_b32 v{P}, 4, v{P}
    v_add_u32 v{P}, {RECL}, v{P}           ; REC + g*16
    v_and_b32 v{P+1}, 3, {vL}              ; d
    v_lshl_add_u32 {vA}, v{P+1}, 1, v{P}
    v_add_u32 {vS}, 14, v{P}
    v_bfe_u32 v{P+1}, {vL}, 2, 2
    v_lshl_add_u32 {vY}, v{P+1}, 1, v{P}
    v_add_u32 {vY}, 6, {vY}
    v_and_b32 {vCol}, 15, {vL}
    v_lshlrev_b32 {vCol}, 4, {vCol}
    v_add_u32 {vZw}, {vZw}, {vCol}         ; j*512 + n*16
    s_mov_b32 {sPos}, 0
    v_mov_b32 v{P+4}, {QW}
    v_mov_b32 v{P+5}, 16
    v_mov_b32 v{vZero+3}, 0x3fff0000""")
    for i in range(4):
        A(f"    s_waitcnt vmcnt({NE+3-i})")
        if i == 3: A("    ;@STAMP 3")
        A(f"    s_mov_b64 exec, s[{MASK+2*i}:{MASK+2*i+1}]")
        A(f"    v_lshl_add_u32 v{80+i}, v{80+i}, 2, {sT}")
        A(f"    ds_add_rtn_u32 v{84+i}, v{80+i}, v{P+13}")
    A(f"""    s_mov_b64 exec, 1
    ds_write_b32 v{P+4}, v{P+5}
    s_mov_b64 exec, -1
    s_cmp_eq_u64 s[{MASK}:{MASK+1}], 0
    s_waitcnt lgkmcnt(0)
    s_barrier
    ;@STAMP 4
    ds_read_b32 v{P}, v{P+14}""")
    if NE < 4:
        A("    s_cbranch_scc1 K2_NOREC")
        for i in range(NE, 4): recload(i)
        A("K2_NOREC:")
    A(f"""    s_waitcnt lgkmcnt(0)
    v_add_u32 v{P+1}, 3, v{P}
    v_and_b32 v{P+1}, -4, v{P+1}
    v_mov_b32 v{P+2}, v{P+1}""")
    dpp_scan(f"v{P+2}")
    A(f"""    v_sub_u32 v{P+3}, v{P+2}, v{P}
    v_sub_u32 v{P+2}, v{P+2}, v{P+1}       ; base
    s_mov_b32 {sT}, {RECL}
    v_lshl_or_b32 {vBP}, v{P+1}, 16, v{P+2}
    s_cbranch_scc1 K2_NOSCAT""")
    for i in range(4):
        A(f"    ds_bpermute_b32 v{80+i}, v{80+i}, v{P+3}")
    for i in range(4):
        A(f"    s_waitcnt lgkmcnt({3-i})")
        A(f"    v_add_u32 v{80+i}, v{80+i}, v{84+i}")
        A(f"    v_lshl_add_u32 v{80+i}, v{80+i}, 4, {sT}")
    for i in range(4):
        A(f"    s_mov_b64 exec, s[{MASK+2*i}:{MASK+2*i+1}]")
        A(f"    s_waitcnt vmcnt({3-i})")
        A(f"    ds_write_b128 v{80+i}, v[{RAW+4*i}:{RAW+4*i+3}]")
    A(f"""    s_mov_b64 exec, -1
K2_NOSCAT:
    s_sub_u32 {sT2}, {sWave}, 13
    s_cbranch_scc1 K2_NOPAD
    v_add_u32 v{P+2}, {sT2}, v{P+2}
    v_cmp_lt_u32 vcc, v{P+2}, v{P+3}
    v_lshl_add_u32 v{P+2}, v{P+2}, 4, {sT}
    s_mov_b64 exec, vcc
    ds_write_b128 v{P+2}, v[{vZero}:{vZero+3}]
    s_mov_b64 exec, -1""")
    if XW:
        A(f"""    s_cmp_lt_u32 {sWave}, 14
    s_cbranch_scc1 K2_NOPAD
    s_cmp_lg_u32 {sR0}, 0
    s_cbranch_scc1 K2_NOPAD
    s_lshl_b32 {sT}, {sWave}, 7
    s_mul_i32 {sT2}, s2, {NPB*512}
    s_and_b32 {sT}, {sT}, 128
    s_add_u32 {sT}, {sT}, {sT2}
    v_min_u32 v{P}, {NPB-1}, {vL}
    v_lshl_add_u32 v{P}, v{P}, 9, {sT}
    buffer_load_dword v{P+20}, v{P}, {sX}, 0 offen""")
        if XW == 2:
            A(f"    buffer_load_dword v{P+21}, v{P}, {sX}, 0 offen offset:256")
    A(f"""K2_NOPAD:
    s_mov_b32 {sItem}, {sWave}
    s_mov_b32 {sH}, -1
    s_mov_b32 {sGC}, {QW+4}
    s_waitcnt lgkmcnt(0)
    s_barrier
    ;@STAMP 5
    ;@CLK 0
    {'s_setprio 2' if PRIO else ''}
K2_ITEM:
    v_mov_b32 v{TM}, {QW}
    v_mov_b32 v{TM+1}, 1
    v_writelane_b32 v{TM}, {sGC}, 1
    s_mov_b64 exec, 3
    ds_add_rtn_u32 {vItem}, v{TM}, v{TM+1}
    s_mov_b64 exec, -1
    s_cmp_ge_u32 {sItem}, {sNN2}
    s_cbranch_scc1 K2_DONE
    s_cmp_ge_u32 {sItem}, {sNN}
    s_cselect_b32 {sT}, 1, 0
    s_cselect_b32 {sT2}, {sNN}, 0
    s_sub_u32 {sNode}, {sItem}, {sT2}
    s_sub_u32 {sNode}, {sNode}, 1
    s_cselect_b32 {sNode}, {sNL}, {sNode}
    s_add_u32 {sPf}, {sNode}, {sN0}
    s_lshl_b32 {sPf}, {sPf}, 9
    s_lshr_b32 {sGC}, {sNode}, 4
    s_lshl2_add_u32 {sGC}, {sGC}, {CNTL+240}
    s_cmp_eq_u32 {sT}, {sH}
    v_readlane_b32 {sBP}, {vBP}, {sNode}
    s_cbranch_scc1 K2_SAMEH
    s_mov_b32 {sH}, {sT}
    ;@STAMP 6
    s_lshl_b32 {sSoff}, {sH}, 8
    v_mbcnt_lo_u32_b32 v{TM+2}, -1, 0
    s_mov_b32 {sT2}, {hex(lut(VAR,0))}
    s_cmov_b32 {sT2}, {hex(lut(VAR,1))}
    v_mbcnt_hi_u32_b32 v{TM+2}, -1, v{TM+2}
    v_and_b32 v{TM+3}, 0x70, {vCol}
    v_lshrrev_b32 v{TM+2}, 3, v{TM+2}
    v_lshlrev_b32 v{TM+2}, 2, v{TM+2}
    v_bfe_u32 {vWz}, {sT2}, v{TM+2}, 4
    v_lshl_add_u32 {vWz}, {vWz}, 7, v{TM+3}
    v_add_u32 {vWz}, {WZL}, {vWz}
K2_SAMEH:
    s_lshr_b32 {sRem}, {sBP}, 16
    s_cbranch_scc0 K2_EMPTY
    s_and_b32 {sT2}, {sRem}, 4
    s_cselect_b32 {sAm}, 0, -1
    s_add_u32 {sRem}, {sRem}, {sT2}
    s_and_b32 {sT}, {sBP}, 0xffff
    s_sub_u32 {sT}, {sT}, {sT2}
    s_lshl_b32 {sT}, {sT}, 4
    s_sub_u32 {sDelta}, {sT}, {sPos}
    s_mov_b32 {sPos}, {sT}
    s_and_b32 {sT}, {sRem}, 31
    s_cmp_eq_u32 {sT}, 8
    s_cbranch_scc1 K2_F1
    s_cmp_eq_u32 {sT}, 16
    s_cbranch_scc1 K2_F2
    s_cmp_eq_u32 {sT}, 24
    s_cbranch_scc1 K2_F3""")
    for nq in (4, 1, 2, 3):
        A(f"K2_F{nq}:")
        kstep(nq, True)
        A(f"    s_movk_i32 {sDelta}, {nq*128}")
        A(f"    s_sub_u32 {sRem}, {sRem}, {nq*8}")
        A(f"    s_cmp_eq_u32 {sRem}, 0")
        A(f"    s_cbranch_scc1 K2_EPI")
        if nq != 3:
            A(f"    s_branch K2_LOOP")
    A("K2_LOOP:")
    A(f"    s_add_u32 {sPos}, {sPos}, {sDelta}")
    kstep(4, False)
    A(f"""    s_movk_i32 {sDelta}, 512
    s_sub_u32 {sRem}, {sRem}, 32
    s_cmp_eq_u32 {sRem}, 0
    s_cbranch_scc0 K2_LOOP
K2_EPI:""")
    for t in range(8):
        A(f"    ds_read_b128 v[{RAW+4*t}:{RAW+4*t+3}], {vWz} offset:{768*t}")
    def zaddr():
        A(f"""    s_lshl_b32 {sT}, {sNode}, 11
    s_and_b32 {sT2}, {sNode}, 7
    s_lshl_b32 {sT2}, {sT2}, 5
    s_or_b32 {sT}, {sT}, {sT2}
    s_or_b32 {sT}, {sT}, {sSoff}
    v_xor_b32 v{TM}, {sT}, {vZw}""")
    zaddr()
    A(f"""    v_readfirstlane_b32 {sItem}, {vItem}
    s_cmp_eq_u32 {sR0}, 0""")
    for q in range(4):
        A(f"    s_waitcnt lgkmcnt({6-2*q})")
        for r in range(4):
            for t in (2*q, 2*q+1):
                op = "v_mul_f32" if r == 0 else "v_fmac_f32"
                A(f"    {op} v{BT+t}, v{RAW+4*t+r}, v{ACC+4*t+r}")
    A("    s_cbranch_scc0 K2_ACC")
    A("K2_NOACC:")
    for q in range(4):
        A(f"    v_cvt_pk_bf16_f32 v{AF+q}, v{BT+2*q}, v{BT+2*q+1}")
    A(f"""    ds_write_b128 v{TM}, v[{AF}:{AF+3}]
    s_branch K2_ITEM
K2_ACC:
    ds_read_b128 v[{AF}:{AF+3}], v{TM}
    s_waitcnt lgkmcnt(0)""")
    for q in range(4):
        A(f"    v_lshlrev_b32 v{TM+1}, 16, v{AF+q}")
        A(f"    v_and_b32 v{TM+2}, 0xffff0000, v{AF+q}")
        A(f"    v_add_f32 v{BT+2*q}, v{BT+2*q}, v{TM+1}")
        A(f"    v_add_f32 v{BT+2*q+1}, v{BT+2*q+1}, v{TM+2}")
    A(f"""    s_branch K2_NOACC
K2_EMPTY:
    s_waitcnt lgkmcnt(0)
    v_readfirstlane_b32 {sItem}, {vItem}
    s_cmp_eq_u32 {sR0}, 0
    s_cbranch_scc0 K2_ITEM""")
    zaddr()
    A(f"""    v_mov_b64 v[{AF}:{AF+1}], 0
    v_mov_b64 v[{AF+2}:{AF+3}], 0
    ds_write_b128 v{TM}, v[{AF}:{AF+3}]
    s_branch K2_ITEM
K2_DONE:
    {'s_setprio 0' if PRIO else ''}
    ;@STAMP 7
    ;@CLK 1
    s_add_u32 {sF0}, {sF0}, {RND}
    s_add_u32 {sR0}, {sR0}, {RND}
    s_cmp_lt_u32 {sR0}, {sTot}
    v_mbcnt_lo_u32_b32 v0, -1, 0
    v_mbcnt_hi_u32_b32 v0, -1, v0          ; lane
    s_waitcnt vmcnt(0) lgkmcnt(0)
    s_cbranch_scc0 K2_LAST
    v_mov_b32 {vL}, v0
    s_barrier
    s_branch K2_ROUND
K2_LAST:
    s_and_b32 {sT}, {sWave}, 12
    s_lshl_b32 {sNode}, {sT}, 2
    s_cmp_ge_u32 {sNode}, {sNN}
    s_cbranch_scc1 K2_END
    s_add_u32 {sT}, {sT}, {CNTL+240}
    v_mov_b32 v124, {sT}
    s_sub_u32 {sRem}, {sNN}, {sNode}
    s_min_u32 {sRem}, {sRem}, 16
    s_lshl_b32 {sRem}, {sRem}, 1
    v_and_b32 v2, 15, v0
    v_add_u32 v2, {sNode}, v2
    v_lshrrev_b32 v3, 4, v0                ; g
    v_and_b32 v4, 7, v2
    v_lshlrev_b32 v4, 1, v4
    v_xor_b32 v4, v4, v3
    v_lshlrev_b32 v4, 4, v4
    v_lshl_add_u32 v4, v2, 11, v4
    v_xor_b32 v5, 64, v4
    v_xor_b32 v6, 128, v4
    v_xor_b32 v7, 192, v4
    s_and_b32 {sT}, {sWave}, 3
    s_lshl_b32 {sT2}, {sT}, 5
    v_and_b32 v1, 15, v0
    v_lshl_add_u32 v1, v1, 4, {sT2}
    v_lshl_add_u32 v1, v3, 3, v1
    v_lshl_add_u32 v1, v2, 11, v1
    v_cmp_gt_u32 s[{MASK}:{MASK+1}], {sNN}, v2
    v_lshrrev_b32 v2, 5, v0
    v_lshl_add_u32 v2, {sT}, 2, v2
    v_and_b32 v3, 31, v0
    v_add_u32 v3, v3, v2
    v_add_u32 v2, {sNode}, v2
    v_lshlrev_b32 v3, 4, v3
    v_lshl_add_u32 v3, v2, 11, v3
    v_cmp_gt_u32 s[{MASK+2}:{MASK+3}], {sNN}, v2
    v_add_u32 v2, 2, v2
    v_cmp_gt_u32 s[{MASK+4}:{MASK+5}], {sNN}, v2
    s_lshl2_add_u32 {sT}, {sT}, {sNode}
    s_add_u32 {sT}, {sT}, {sN0}
    s_lshl_b32 {sT}, {sT}, 9
    v_lshl_add_u32 v0, v0, 4, {sT}
    v_mov_b32 v2, 1
K2_WAITG:
    ds_read_b32 v125, v124
    s_waitcnt lgkmcnt(0)
    v_readfirstlane_b32 {sT}, v125
    s_cmp_lt_u32 {sT}, {sRem}
    s_cbranch_scc1 K2_WAITG
    ;@STAMP 8""")
    terms = [(0, 0, 0), (1, 4, 2), (2, 8, 2), (3, 12, 2),
             (0, 5, 1), (1, 1, 3), (2, 2, 3), (3, 3, 3),
             (0, 10, 1), (1, 11, 4), (2, 13, 4), (3, 6, 4),
             (0, 15, 1), (1, 14, 4), (2, 7, 4), (3, 9, 4)]
    seq = [(c, jk, blk, s) for s in range(2) for (c, jk, blk) in terms]
    seq = seq[:25] + [seq[28]] + seq[25:28] + seq[29:]
    NS = len(seq)
    OUT = 8
    ZR = 64
    NBUF = 14
    started = set()
    CA = 124
    def arrive():
        A(f"""    s_mov_b64 exec, 1
    ds_add_u32 v{CA}, v2
    s_mov_b64 exec, -1
    s_add_u32 {sRem}, {sRem}, 4""")
    def zread(k):
        c, zb, blk, s = seq[k]
        r = ZR + 4 * (k % NBUF)
        A(f"    ds_read_b128 v[{r}:{r+3}], v{4+(zb&1)*2+s} offset:{(zb>>1)*256}")
    for k in range(NBUF):
        zread(k)
    for k in range(NS):
        c, zb, blk, s = seq[k]
        issued = min(NS, k + NBUF)
        A(f"    s_waitcnt lgkmcnt({issued-k-1+(1 if k+NBUF >= NS else 0)})")
        r = ZR + 4 * (k % NBUF)
        w = WW + 4 * (blk * 2 + s)
        cc = f"v[{OUT+4*c}:{OUT+4*c+3}]" if c in started else "0"
        started.add(c)
        A(f"    v_mfma_f32_16x16x32_bf16 v[{OUT+4*c}:{OUT+4*c+3}], v[{w}:{w+3}], v[{r}:{r+3}], {cc}")
        if k + NBUF < NS:
            zread(k + NBUF)
            if k + NBUF == NS - 1: arrive()
    G = 120; O = 24
    def waitg(lbl):
        A(f"""{lbl}:
    ds_read_b32 v{CA+1}, v{CA}
    s_waitcnt lgkmcnt(0)
    v_readfirstlane_b32 {sT}, v{CA+1}
    s_cmp_lt_u32 {sT}, {sRem}
    s_cbranch_scc1 {lbl}""")
    A(f"    s_mov_b32 {sT}, 0xbfb8aa3b")
    for r in range(4):
        A(f"    v_mul_f32 v{G+r}, {sT}, v{OUT+r}")
    for r in range(4):
        A(f"    v_exp_f32 v{G+r}, v{G+r}")
    A(f"    v_cvt_pk_bf16_f32 v{O}, v{OUT}, v{OUT+1}")
    for r in range(4):
        A(f"    v_add_f32 v{G+r}, 1.0, v{G+r}")
    for r in range(4):
        A(f"    v_rcp_f32 v{G+r}, v{G+r}")
    A(f"    v_cvt_pk_bf16_f32 v{O+1}, v{OUT+2}, v{OUT+3}")
    for c in range(1, 4):
        for r in range(4):
            A(f"    v_mul_f32 v{OUT+4*c+r}, v{OUT+4*c+r}, v{G+r}")
        A(f"    v_cvt_pk_bf16_f32 v{O+2*c}, v{OUT+4*c}, v{OUT+4*c+1}")
        A(f"    v_cvt_pk_bf16_f32 v{O+1+2*c}, v{OUT+4*c+2}, v{OUT+4*c+3}")
    waitg("K2_WAITR")
    A(f"    s_mov_b64 exec, s[{MASK}:{MASK+1}]")
    for c in range(4):
        A(f"    ds_write_b64 v1, v[{O+2*c}:{O+1+2*c}] offset:{128*c}")
    arrive()
    waitg("K2_WAITX")
    A(f"""    ds_read_b128 v[8:11], v3
    ds_read_b128 v[12:15], v3 offset:{2*2048+32}
    s_mov_b64 exec, s[{MASK+2}:{MASK+3}]
    s_cbranch_execz K2_OUT
    s_waitcnt lgkmcnt(1)
    global_store_dwordx4 v0, v[8:11], s[6:7] {OPOL}
    s_mov_b64 exec, s[{MASK+4}:{MASK+5}]
    s_cbranch_execz K2_OUT
    s_waitcnt lgkmcnt(0)
    global_store_dwordx4 v0, v[12:15], s[6:7] offset:1024 {OPOL}
K2_OUT:""")
    if STAMPS:
        A(f"""    ;@STAMP 9
    s_waitcnt vmcnt(0)
    ;@STAMP 10
    ;@STAMPOUT 1 {sWS} {sWave}""")
    A("""K2_END:
    s_endpgm""")

def kd(name, vgpr, sgpr):
    A(".p2align 6")
    A(f""".amdhsa_kernel {name}
  .amdhsa_next_free_vgpr {vgpr}
  .amdhsa_next_free_sgpr {sgpr}
  .amdhsa_accum_offset {(vgpr+3)//4*4}
  .amdhsa_group_segment_fixed_size 0
  .amdhsa_kernarg_size 96
  .amdhsa_user_sgpr_count 2
  .amdhsa_user_sgpr_kernarg_segment_ptr 1
  .amdhsa_system_sgpr_workgroup_id_x 1
  .amdhsa_float_denorm_mode_32 3
.end_amdhsa_kernel""")

A(HEADER)
A(f"; @launch kernel=bin_kernel grid=(256,1,1) block=({K1_THR},1,1) lds={K1_LDS}")
A(f"; @launch kernel=agg_kernel grid=(256,1,1) block=(1024,1,1) lds={K2_LDS}")
A('.amdgcn_target "amdgcn-amd-amdhsa--gfx950"')
A(".text")
A(".globl bin_kernel")
A(".globl agg_kernel")
gen_k1()
gen_k2()
A('.section .rodata,"a"')
kd("bin_kernel", 64, 88 if STAMPS else 32)
kd("agg_kernel", 128, 88 if STAMPS else 64)
out = sys.argv[1] if len(sys.argv) > 1 else "standalone__tensor_product_equiv_equiformer__graph.s"
open(out, "w").write("\n".join(L) + "\n")
print("wrote", out, len(L), "lines")
```

```python
import sys

N = 12500; E = 800000; CHUNK = 3200; NCH = 250; NB = 256; NPB = 49
REC_OFF = 0
BYT_OFF = 256 * CHUNK * 16
TAB_OFF = BYT_OFF + 256 * CHUNK + 8192

L = []
def A(s=""):
    for ln in s.split("\n"):
        t = ln.strip()
        if t.startswith(";@STAMPOUT"):
            _, k, ws, wv = t.split()
            stamp_out(int(k), ws, wv)
        elif t.startswith(";@CLK"):
            if STAMPS:
                L.append("    s_waitcnt lgkmcnt(0)\n    s_memtime s[62:63]\n    s_waitcnt lgkmcnt(0)")
                L.append("    s_sub_u32 s79, s62, s79" if t.split()[1] == "1" else "    s_mov_b32 s79, s62")
        elif t.startswith(";@STAMP"):
            stamp(int(t.split()[1]))
        else:
            L.append(ln)

HEADER = """; Kernarg layout for this problem (96 bytes, ptrs only, base s[0:1]):
; destination node, aggregates with MFMA, applies the radial weights, the two linear maps and the gate."""

import os
STAMPS = os.environ.get("STAMPS") == "1"
STAMP_OFF = 32 << 20
def opt(name, dflt):
    return os.environ.get(name, dflt)
NT = opt("NT", "nt"); SC = opt("SC", "sc1"); PF = int(opt("PF", "0")); XW = int(opt("XW", "0")); OPOL = opt("OPOL", "sc0 sc1"); WWARM = int(opt("WWARM", "1")); PRIO = int(opt("PRIO", "1")); NE = int(opt("NE", "4")); SPF = int(opt("SPF", "1")); K16 = int(opt("K16", "1")); RPOL = opt("RPOL", ""); KC = int(opt("KC", "0")); XPOL = opt("XPOL", ""); XWN = int(opt("XWN", "782")); CH = int(opt("CH", "0")); GPOL = opt("GPOL", ""); TPOL = opt("TPOL", "")
def stamp(i):
    if STAMPS:
        A(f"""    s_waitcnt lgkmcnt(0)
    s_memrealtime s[62:63]
    s_waitcnt lgkmcnt(0)
    s_mov_b32 s{64+i}, s62""")
def stamp_out(kidx, ws, wavereg):
    if STAMPS:
        A(f"""    s_mov_b64 exec, 1
    s_lshl_b32 s62, s2, 4
    s_add_u32 s62, s62, {wavereg}
    s_lshl_b32 s62, s62, 6
    s_add_u32 s62, s62, {STAMP_OFF + kidx*(1<<20)}
    v_mov_b32 v60, s62""")
        for i in range(16):
            A(f"    v_mov_b32 v61, s{64+i}")
            A(f"    global_store_dword v60, v61, {ws} offset:{4*i}")

def dpp_scan(v):
    for sh in (1, 2, 4, 8):
        A("    s_nop 1")
        A(f"    v_add_u32_dpp {v}, {v}, {v} row_shr:{sh} row_mask:0xf bank_mask:0xf")
    A("    s_nop 1")
    A(f"    v_add_u32_dpp {v}, {v}, {v} row_bcast:15 row_mask:0xa bank_mask:0xf")
    A("    s_nop 1")
    A(f"    v_add_u32_dpp {v}, {v}, {v} row_bcast:31 row_mask:0xc bank_mask:0xf")

K1_STG = 0; K1_BYT = 51200; K1_CNT = 54400; K1_BASE = 55424; K1_LDS = 56448
K1_THR = 1024 if PF else 832

def gen_k1():
    K1CH = f"s_mul_i32 s3, s2, {CHUNK//4}"
    if KC:
        K1CH = f"""s_and_b32 s3, s2, 7
    s_min_u32 s24, s3, 2
    s_mul_i32 s3, s3, 31
    s_add_u32 s3, s3, s24
    s_lshr_b32 s24, s2, 3
    s_add_u32 s3, s3, s24
    s_mul_i32 s3, s3, {CHUNK//4}"""
    A(".p2align 8")
    A(".type bin_kernel,@function")
    A("bin_kernel:")
    A(f"""    s_cmp_ge_u32 s2, 256
    s_cbranch_scc1 K1_END
    s_load_dwordx4 s[4:7], s[0:1], 8
    s_load_dwordx4 s[8:11], s[0:1], 24
    s_load_dwordx2 s[18:19], s[0:1], 88    ; ws
    v_readfirstlane_b32 s23, v0""")
    if PF:
        A("""    s_cmp_ge_u32 s23, 832
    s_cbranch_scc1 K1_PF""")
    A(f"""    s_cmp_ge_u32 s2, {NCH}
    s_cbranch_scc1 {'K1_W' if WWARM else 'K1_END'}
    ;@STAMP 0
    {K1CH}
    v_add_u32 v1, s3, v0
    v_lshlrev_b32 v2, 4, v1
    v_lshlrev_b32 v3, 5, v1
    v_mul_u32_u24 v28, 24, v1
    v_and_b32 v29, 255, v0
    v_lshlrev_b32 v29, 2, v29
    v_mov_b32 v30, 0
    ds_write_b32 v29, v30 offset:{K1_CNT}
    v_cmp_gt_u32 vcc, {CHUNK//4}, v0
    s_mov_b64 s[20:21], vcc
    s_mov_b64 exec, vcc
    s_waitcnt lgkmcnt(0)
    global_load_dwordx4 v[4:7], v2, s[10:11] {NT}           ; dst
    s_barrier
    global_load_dwordx4 v[8:11], v2, s[8:9] {NT}            ; src
    global_load_dwordx4 v[12:15], v3, s[6:7] {NT}           ; e_attr
    global_load_dwordx4 v[16:19], v3, s[6:7] offset:16 {NT}
    global_load_dwordx3 v[20:22], v28, s[4:5] {NT}          ; rhat
    global_load_dwordx3 v[24:26], v28, s[4:5] offset:12 {NT}
    v_mov_b32 v30, 1
    s_movk_i32 s22, -{NPB}
    s_and_b32 s24, s2, 7
    s_lshl_b32 s24, s24, 5
    s_lshr_b32 s25, s2, 3
    s_add_u32 s26, s24, s25
    s_waitcnt vmcnt(5)
    ;@STAMP 1""")
    for i in range(4):
        A(f"    v_mul_u32_u24 v{32+i}, 21400, v{4+i}")
    for i in range(4):
        A(f"    v_lshrrev_b32 v{32+i}, 20, v{32+i}          ; bucket")
    for i in range(4):
        A(f"    v_mad_i32_i24 v{4+i}, v{32+i}, s22, v{4+i}")
    for i in range(4):
        A(f"    v_lshlrev_b32 v{32+i}, 2, v{32+i}")
        A(f"    ds_add_rtn_u32 v{36+i}, v{32+i}, v30 offset:{K1_CNT}")
    A(f"""    s_mov_b64 exec, -1
    v_and_b32 v1, 63, v0
    v_lshlrev_b32 v2, 4, v1
    s_waitcnt lgkmcnt(0)
    s_barrier
    ;@STAMP 2
    ds_read_b128 v[40:43], v2 offset:{K1_CNT}
    s_waitcnt lgkmcnt(0)
    v_add_u32 v45, v40, v41
    v_add_u32 v46, v45, v42
    v_add_u32 v47, v46, v43
    v_mov_b32 v48, v47""")
    dpp_scan("v48")
    A(f"""    v_sub_u32 v52, v48, v47
    v_add_u32 v53, v52, v40
    v_add_u32 v54, v52, v45
    v_add_u32 v55, v52, v46
    ds_write_b128 v2, v[52:55] offset:{K1_BASE}
    s_mov_b64 exec, s[20:21]
    s_waitcnt lgkmcnt(0)""")
    for i in range(4):
        A(f"    ds_read_b32 v{32+i}, v{32+i} offset:{K1_BASE}")
    A(f"""    s_cmp_lt_u32 s23, 768
    s_cbranch_scc1 K1_NOTAB
    s_mov_b64 exec, -1
    s_lshl_b32 s24, s26, 2
    s_add_u32 s24, s24, {TAB_OFF}
    v_lshlrev_b32 v44, 12, v1
    v_add_u32 v44, s24, v44
    s_mul_i32 s24, s26, {CHUNK}""")
    for i in range(4):
        A(f"    v_lshlrev_b32 v{56+i}, 20, v{40+i}")
        A(f"    v_add3_u32 v{56+i}, v{56+i}, v{52+i}, s24")
        A(f"    global_store_dword v44, v{56+i}, s[18:19] offset:{1024*i} {TPOL}")
    A(f"""    s_mov_b64 exec, s[20:21]
    s_waitcnt vmcnt(4)
    s_branch K1_TABDONE
K1_NOTAB:
    s_waitcnt vmcnt(0)
K1_TABDONE:
    ;@STAMP 3
    s_mov_b32 s24, 0x05040100
    v_alignbit_b32 v28, v22, v21, 16
    v_alignbit_b32 v29, v9, v22, 16
    v_perm_b32 v21, v8, v21, s24
    v_alignbit_b32 v30, v26, v25, 16
    v_alignbit_b32 v31, v11, v26, 16
    v_perm_b32 v25, v10, v25, s24
    s_waitcnt lgkmcnt(0)""")
    ypair = [20, 28, 24, 30]
    for i in range(4):
        A(f"    v_add_u32 v{32+i}, v{32+i}, v{36+i}")
        A(f"    v_lshlrev_b32 v{36+i}, 4, v{32+i}")
        A(f"    ds_write2_b64 v{36+i}, v[{12+2*i}:{13+2*i}], v[{ypair[i]}:{ypair[i]+1}] offset0:0 offset1:1")
        A(f"    ds_write_b8 v{32+i}, v{4+i} offset:{K1_BYT}")
    A(f"""    v_lshlrev_b32 v2, 4, v0
    s_mul_i32 s24, s26, {CHUNK*16}
    s_mul_i32 s25, s26, {CHUNK}
    s_add_u32 s25, s25, {BYT_OFF}
    v_add_u32 v3, s24, v2
    v_add_u32 v4, {1*12800}, v3
    v_add_u32 v5, {2*12800}, v3
    v_add_u32 v6, {3*12800}, v3
    v_add_u32 v7, s25, v2
    s_waitcnt lgkmcnt(0)
    s_barrier
    ;@STAMP 4""")
    for i in range(4):
        A(f"    ds_read_b128 v[{8+4*i}:{11+4*i}], v2 offset:{12800*i}")
    for i in range(4):
        A(f"    s_waitcnt lgkmcnt({3-i})")
        A(f"    global_store_dwordx4 v{3+i}, v[{8+4*i}:{11+4*i}], s[18:19] {SC}")
    A(f"""    v_cmp_gt_u32 vcc, {CHUNK//16}, v0
    s_and_b64 exec, exec, vcc
    s_cbranch_execz K1_NOBYT
    ds_read_b128 v[24:27], v2 offset:{K1_BYT}
    s_waitcnt lgkmcnt(0)
    global_store_dwordx4 v7, v[24:27], s[18:19] {SC}
K1_NOBYT:""")
    if PF == 5: A("    s_barrier")
    if STAMPS:
        A("""    ;@STAMP 5
    s_waitcnt vmcnt(0)
    ;@STAMP 6
    s_lshr_b32 s23, s23, 6
    ;@STAMPOUT 0 s[18:19] s23""")
    A("    s_endpgm")
    if WWARM:
        A("""K1_W:
    s_load_dwordx4 s[12:15], s[0:1], 40
    s_load_dwordx2 s[16:17], s[0:1], 56    ; w_si1
    s_cmp_ge_u32 s23, 192
    s_cbranch_scc1 K1_END
    v_lshlrev_b32 v1, 7, v0
    v_min_u32 v2, 16256, v1
    v_min_u32 v3, 2432, v1
    s_waitcnt lgkmcnt(0)
    global_load_dword v4, v1, s[16:17]
    global_load_dword v5, v2, s[14:15]
    global_load_dword v6, v3, s[12:13]
    s_endpgm""")
    if PF:
        A(f"""K1_PF:
    s_load_dwordx2 s[12:13], s[0:1], 0     ; x
    s_mov_b32 s14, {N*512}
    s_mov_b32 s15, 0x00020000
    v_subrev_u32 v1, 832, v0               ; 0..191
    v_lshrrev_b32 v2, 1, v1
    v_and_b32 v1, 1, v1
    v_lshlrev_b32 v1, 7, v1
    v_lshl_add_u32 v1, v2, 9, v1
    s_lshr_b32 s3, s2, 3
    s_mul_i32 s3, s3, {391*512}
    s_mul_i32 s16, s2, {49*512}
    s_add_u32 s16, s16, 256
    v_add_u32 v3, s3, v1
    v_cmp_gt_u32 vcc, {NPB}, v2
    v_add_u32 v8, s16, v1
    v_mov_b32 v9, 0x7fffff00
    v_cndmask_b32 v8, v9, v8, vcc
    v_cmp_gt_u32 vcc, {391-4*96}, v2""")
        for i in range(1, 5):
            A(f"    v_add_u32 v{3+i}, {96*512*i}, v3")
        A("""    v_cndmask_b32 v7, v9, v7, vcc
    s_waitcnt lgkmcnt(0)""")
        if PF >= 3:
            A(f"""    v_subrev_u32 v1, 832, v0
    s_mul_i32 s16, s2, {49*512}
    v_cmp_gt_u32 vcc, 4, v1
    v_lshl_add_u32 v3, v1, 7, s16
    v_add_u32 v4, {192*128}, v3
    v_cndmask_b32 v4, v9, v4, vcc""")
        nb = {1: 2, 2: 1, 3: 2, 4: 1, 5: 3}[PF]
        for i in range(nb): A("    s_barrier")
        if PF == 5: A("    s_barrier")
        for i in range(6 if PF < 3 else 2):
            A(f"    buffer_load_dword v{10+i}, v{3+i}, s[12:15], 0 offen")
        for i in range(2 - nb): A("    s_barrier")
        if PF != 5: A("    s_barrier")
        A("    s_waitcnt vmcnt(0)")
        if STAMPS:
            A("""    ;@STAMP 0
    ;@STAMP 1
    ;@STAMP 2
    ;@STAMP 3
    ;@STAMP 4
    ;@STAMP 5
    ;@STAMP 6
    s_lshr_b32 s23, s23, 6
    ;@STAMPOUT 0 s[18:19] s23""")
    A("""K1_END:
    s_endpgm""")

ZS = 2048
ZEND = NPB * ZS
WZL = ZEND
CNTL = WZL + 6144
assert CNTL % 256 == 0
QW = CNTL + 256
RECL = QW + 16
K2_LDS = 163840
RND = (K2_LDS - RECL) // 16 - NPB * 3
SCR = RECL
WST = 0
RADL = 40960

vA, vY, vS, vCol, vZw, vWz, vBP, vItem = [f"v{i}" for i in range(8)]
TM = 8; AF = 12; BT = 16; WW = 24; RAW = 64; ACC = 96
sX = "s[8:11]"
sWS = "s[12:13]"
sN0 = "s14"; sNN = "s15"; sWave = "s16"; sF0 = "s17"; sTot = "s18"; sPos = "s19"; sDelta = "s20"
sItem = "s21"; sH = "s22"; sNode = "s23"; sBP = "s24"; sRem = "s25"; sSelLo = "s26"; sSelHi = "s27"
sT = "s28"; sT2 = "s29"; sNN2 = "s30"; sSoff = "s31"; sB = "s3"; sR0 = "s50"; sLim = "s51"; sAm = "s52"; sGC = "s53"; sNL = "s54"; sSc = "s55"; sPf = "s56"
MASK = 32
sJM = "s[40:41]"
sBYT = "s[42:43]"
sRAD = "s[44:45]"; sW0 = "s[46:47]"; sW1 = "s[48:49]"
BLK = [0, 5, 6, 7, 2, 1, 10, 9, 3, 10, 1, 8, 4, 9, 8, 1]
VAR = [0, 3, 3, 3, 2, 1, 4, 5, 2, 5, 1, 4, 2, 4, 5, 1]
def lut(tab, h):
    v = 0
    for j in range(4):
        for b in range(2):
            v |= tab[4*j + 2*h + b] << (4 * (2*j + b))
    return v

def kstep(nq, first):
    n = 2 * nq
    YR = [AF, AF+1, AF+2, AF+3, TM, TM+1, TM+2, TM+3]
    sreg = lambda i: (TM if (first and i == 0) else RAW + 4 * i)
    A(f"    v_add_u32 {vS}, {sDelta}, {vS}")
    A(f"    v_add_u32 {vA}, {sDelta}, {vA}")
    for i in range(n):
        A(f"    ds_read_u16 v{sreg(i)}, {vS} offset:{64*i}")
    na = min(n, 6)
    for i in range(na):
        A(f"    ds_read_u16_d16_hi v{BT+i}, {vA} offset:{64*i}")
    A(f"    v_add_u32 {vY}, {sDelta}, {vY}")
    if first:
        A(f"    v_mov_b64 v[{RAW}:{RAW+1}], 0")
        A(f"    v_mov_b64 v[{RAW+2}:{RAW+3}], 0")
        A(f"    s_cmp_eq_u32 {sAm}, 0")
    for i in range(n):
        if i % 2 == 0:
            A(f"    s_waitcnt lgkmcnt({n-2-i+na})")
        if first and i == 0:
            A(f"    s_cbranch_scc1 K2_SK{nq}")
        A(f"    v_lshl_add_u32 v{sreg(i)}, v{sreg(i)}, {8 if CH == 1 else 9}, {'v127' if CH == 2 else vCol}")
        A(f"    buffer_load_dwordx4 v[{RAW+4*i}:{RAW+4*i+3}], v{sreg(i)}, {sX}, {'s57' if CH else sSoff} offen {GPOL}")
        if first and i == 0:
            A(f"K2_SK{nq}:")
    for i in range(na, n):
        A(f"    ds_read_u16_d16_hi v{BT+i}, {vA} offset:{64*i}")
    A(f"    s_mov_b64 exec, {sJM}")
    for i in range(n):
        A(f"    ds_read_u16_d16_hi v{YR[i]}, {vY} offset:{64*i}")
    A("    s_waitcnt lgkmcnt(0)")
    for i in range(n):
        A(f"    v_mul_f32 v{BT+i}, v{BT+i}, v{YR[i]}")
    A(f"    s_mov_b64 exec, -1")
    if first:
        A(f"    v_and_b32 v{BT}, {sAm}, v{BT}")
        if SPF:
            A(f"    s_buffer_load_dwordx2 s[58:59], {sX}, {sPf} offset:{256+60}")
            A(f"    s_buffer_load_dwordx2 s[58:59], {sX}, {sPf} offset:{384+60}")
    for q in range(nq):
        A(f"    v_cvt_pk_bf16_f32 v{AF+q}, v{BT+2*q}, v{BT+2*q+1}")
    k16 = K16 and nq <= 2
    W = 2 if k16 else 4
    q = nq
    while q < W:
        if q % 2 == 0:
            for b in (AF, BT, BT+4):
                A(f"    v_mov_b64 v[{b+q}:{b+q+1}], 0")
            q += 2
        else:
            for b in (AF, BT, BT+4):
                A(f"    v_mov_b32 v{b+q}, 0")
            q += 1
    A("    s_waitcnt vmcnt(0)")
    def perms(t):
        b = BT + 4 * (t & 1)
        sel = sSelHi if (t & 1) else sSelLo
        for q in range(nq):
            A(f"    v_perm_b32 v{b+q}, v{RAW+4*(2*q+1)+(t>>1)}, v{RAW+4*(2*q)+(t>>1)}, {sel}")
    def mfma(t):
        b = BT + 4 * (t & 1)
        c = "0" if first else f"v[{ACC+4*t}:{ACC+4*t+3}]"
        op = "v_mfma_f32_16x16x16_bf16" if k16 else "v_mfma_f32_16x16x32_bf16"
        A(f"    {op} v[{ACC+4*t}:{ACC+4*t+3}], v[{AF}:{AF+W-1}], v[{b}:{b+W-1}], {c}")
    perms(0)
    for t in range(8):
        if t < 7:
            perms(t + 1)
            if nq == 1 and t == 0:
                A("    s_nop 0")
        else:
            A("    s_nop 0")
        mfma(t)

def gen_k2():
    A(".p2align 8")
    A(".type agg_kernel,@function")
    A("agg_kernel:")
    P = 96
    vL = "v126"; vZero = 120
    A(f"""    s_cmp_ge_u32 s2, 256
    s_cbranch_scc1 K2_END
    s_load_dwordx2 {sWS}, s[0:1], 88       ; ws
    s_load_dwordx4 s[44:47], s[0:1], 40
    s_load_dwordx2 {sW1}, s[0:1], 56       ; w_si1
    s_load_dwordx2 s[8:9], s[0:1], 0       ; x
    s_load_dwordx2 s[6:7], s[0:1], 72      ; out
    ;@STAMP 0
    s_and_b32 {sB}, s2, 7
    s_lshl_b32 {sB}, {sB}, 5
    s_lshr_b32 {sT}, s2, 3
    s_add_u32 {sB}, {sB}, {sT}             ; bucket
    v_lshrrev_b32 v1, 6, v0
    v_and_b32 {vL}, 63, v0                 ; lane
    v_readfirstlane_b32 {sWave}, v1
    s_mul_i32 {sN0}, {sB}, {NPB}
    s_sub_u32 {sNN}, {N}, {sN0}
    s_min_u32 {sNN}, {sNN}, {NPB}
    s_lshl_b32 {sNN2}, {sNN}, 1
    s_sub_u32 {sNL}, {sNN}, 1
    s_mov_b32 s10, {N*512}
    s_mov_b32 s11, 0x00020000
    s_mov_b32 {sSelLo}, 0x05040100
    s_mov_b32 {sSelHi}, 0x07060302
    s_mov_b32 s40, 0xfff0fff0
    s_mov_b32 s41, 0xfff0fff0
    s_lshl_b32 {sF0}, {sWave}, 8
    s_lshl_b32 {sB}, {sB}, 10
    s_add_u32 {sB}, {sB}, {TAB_OFF}
    s_mov_b32 {sR0}, 0
    s_waitcnt lgkmcnt(0)
    s_add_u32 s42, s12, {BYT_OFF}
    s_addc_u32 s43, s13, 0
K2_ROUND:
    v_lshl_add_u32 v4, {vL}, 4, {sB}
    global_load_dwordx4 v[{P}:{P+3}], v4, {sWS}
    v_mov_b64 v[{vZero}:{vZero+1}], 0
    v_mov_b64 v[{vZero+2}:{vZero+3}], 0
    s_lshl_b32 {sSc}, {sWave}, 10
    s_add_u32 {sSc}, {sSc}, {SCR}
    v_lshl_add_u32 v3, {vL}, 4, {sSc}
    ds_write_b128 v3, v[{vZero}:{vZero+3}]           ; marks
    s_mov_b32 {sT}, {CNTL}
    v_lshl_add_u32 v{P+14}, {vL}, 2, {sT}
    ds_write_b32 v{P+14}, v{vZero}
    s_sub_u32 {sT}, {sF0}, {14*256}
    s_cmp_lt_u32 {sT}, 512
    s_cbranch_scc0 K2_NODMA
    s_cmp_lg_u32 {sR0}, 0
    s_cbranch_scc1 K2_NODMA
    s_lshl_b32 {sT}, {sT}, 2               ; 0 / 1024
    v_bfe_u32 v2, {vL}, 4, 1
    s_lshr_b32 {sT2}, {sT}, 8
    v_lshl_or_b32 v2, v2, 1, {sT2}
    v_xor_b32 v2, v2, {vL}
    v_lshl_add_u32 v2, v2, 4, {sT}
    v_lshl_add_u32 v3, {vL}, 4, {sT}
    s_add_u32 m0, {sT}, {RADL}
    v_min_u32 v4, {2560-2048-16}, v3
    global_load_lds_dwordx4 v3, {sRAD}
    global_load_lds_dwordx4 v4, {sRAD} offset:2048
    s_mov_b32 m0, {sT}""")
    for k in range(6):
        if k < 4:
            if k: A(f"    s_add_u32 m0, {sT}, {4096*k}")
            A(f"    s_nop 0")
            A(f"    global_load_lds_dwordx4 v2, {sW0}")
            A(f"    global_load_lds_dwordx4 v2, {sW0} offset:2048")
        A(f"    s_add_u32 m0, {sT}, {16384+4096*k}")
        A(f"    s_nop 0")
        A(f"    global_load_lds_dwordx4 v2, {sW1}")
        A(f"    global_load_lds_dwordx4 v2, {sW1} offset:2048")
        if k < 5: A(f"    v_add_u32 v2, 4096, v2")
    A(f"""K2_NODMA:
    s_mov_b32 vcc_lo, 0x80800000
    s_mov_b32 vcc_hi, 0x80808080
    s_movk_i32 {sT2}, 256
    s_add_u32 {sLim}, {sR0}, {RND}
    s_waitcnt vmcnt(0)
    ;@STAMP 1
    v_cndmask_b32 v{P+3}, v{P+3}, v{vZero}, vcc""")
    for i in range(4):
        A(f"    v_lshrrev_b32 v{P+4+i}, 20, v{P+i}           ; count")
    A(f"""    v_add_u32 v{P+5}, v{P+5}, v{P+4}
    v_add_u32 v{P+6}, v{P+6}, v{P+5}
    v_add_u32 v{P+7}, v{P+7}, v{P+6}
    v_mov_b32 v{P+12}, v{P+7}""")
    fill = [f"    v_and_b32 v{P+i}, 0xfffff, v{P+i}" for i in range(4)]
    fill += [f"    v_add_u32 v{P+16+i}, {64*i}, {vL}" for i in range(1, 4)]
    fill += [f"    v_lshl_add_u32 v{P+13}, {vL}, 2, {sSc}"]
    v = f"v{P+12}"
    steps = [f"row_shr:{sh} row_mask:0xf" for sh in (1, 2, 4, 8)] + ["row_bcast:15 row_mask:0xa", "row_bcast:31 row_mask:0xc"]
    for k, st in enumerate(steps):
        if k < 4:
            A(fill[2*k]); A(fill[2*k+1])
        else:
            A("    s_nop 1")
        A(f"    v_add_u32_dpp {v}, {v}, {v} {st} bank_mask:0xf")
    A(f"""    s_nop 0
    v_readlane_b32 {sTot}, {v}, 63
    v_subrev_u32 v{P+12}, {sF0}, v{P+12}
    v_sub_u32 v{P+8}, v{P+12}, v{P+7}
    s_min_u32 {sLim}, {sLim}, {sTot}
    s_cmp_lt_u32 {sF0}, {sLim}
    s_cbranch_scc0 K2_NOWIN
    v_add_u32 v{P+9}, v{P+8}, v{P+4}
    v_add_u32 v{P+10}, v{P+8}, v{P+5}
    v_add_u32 v{P+11}, v{P+8}, v{P+6}""")
    for i in range(4):
        A(f"    v_sub_u32 v{P+i}, v{P+i}, v{P+8+i}")
    for i in range(5):
        A(f"    v_med3_i32 v{P+8+i}, v{P+8+i}, 0, {sT2}")
    for i in range(4):
        A(f"    v_cmp_gt_i32 s[{MASK+2*i}:{MASK+2*i+1}], v{P+9+i}, v{P+8+i}")
        A(f"    v_lshl_add_u32 v{P+4+i}, v{P+8+i}, 2, {sSc}")
    for i in range(4):
        A(f"    s_mov_b64 exec, s[{MASK+2*i}:{MASK+2*i+1}]")
        A(f"    ds_write_b32 v{P+4+i}, v{P+i}")
    A("    s_mov_b64 exec, -1")
    A("    ;@STAMP 11")
    IX = 88
    for i in range(4):
        A(f"    ds_read_b32 v{IX+i}, v{P+13} offset:{256*i}")
    A(f"    s_sub_u32 {sT}, {sLim}, {sF0}")
    pos = [vL] + [f"v{P+16+i}" for i in range(1, 4)]
    for i in range(4):
        A(f"    v_cmp_gt_u32 s[{MASK+2*i}:{MASK+2*i+1}], {sT}, {pos[i]}")
    A("    s_waitcnt lgkmcnt(0)")
    for st in steps:
        for i in range(4):
            A(f"    v_max_u32_dpp v{IX+i}, v{IX+i}, v{IX+i} {st} bank_mask:0xf")
    A(f"""    ;@STAMP 12
    v_readlane_b32 {sT}, v{IX}, 63
    v_readlane_b32 {sT2}, v{IX+1}, 63
    v_readlane_b32 {sRem}, v{IX+2}, 63
    v_add_u32 v{IX}, v{IX}, {vL}
    s_max_u32 {sT2}, {sT2}, {sT}
    s_max_u32 {sRem}, {sRem}, {sT2}
    global_load_ubyte v80, v{IX}, {sBYT} {RPOL}
    v_max_u32 v{IX+1}, {sT}, v{IX+1}
    v_max_u32 v{IX+2}, {sT2}, v{IX+2}
    v_max_u32 v{IX+3}, {sRem}, v{IX+3}""")
    for i in range(1, 4):
        A(f"    v_add_u32 v{IX+i}, v{IX+i}, {pos[i]}")
        A(f"    global_load_ubyte v{80+i}, v{IX+i}, {sBYT} {RPOL}")
    for i in range(4):
        A(f"    v_lshlrev_b32 v{IX+i}, 4, v{IX+i}")
    A(f"""    ;@STAMP 13
    s_barrier""")
    def recload(i):
        A(f"    global_load_dwordx4 v[{RAW+4*i}:{RAW+4*i+3}], v{IX+i}, {sWS} {RPOL}")
    for i in range(NE): recload(i)
    def xwarm():
        A(f"""    s_lshr_b32 {sT2}, s2, 3
    s_mul_i32 {sT2}, {sT2}, {391*512}
    v_lshl_add_u32 v127, {sWave}, 6, {vL}
    v_cmp_gt_u32 vcc, {XWN}, v127
    v_and_b32 v125, 1, v127
    v_lshrrev_b32 v127, 1, v127
    v_lshlrev_b32 v127, 9, v127
    v_lshl_add_u32 v127, v125, 7, v127
    v_add_u32 v127, {sT2}, v127
    v_mov_b32 v125, 0x7fffff00
    v_cndmask_b32 v127, v125, v127, vcc
    buffer_load_dword v127, v127, {sX}, 0 offen {XPOL}""")
    if XW == 3: xwarm()
    A(f"""    ;@STAMP 14
    s_branch K2_ISSUED
K2_NOWIN:""")
    for i in range(4):
        A(f"    s_mov_b64 s[{MASK+2*i}:{MASK+2*i+1}], 0")
    A(f"""    s_waitcnt lgkmcnt(0)
    s_barrier
K2_ISSUED:
    ;@STAMP 2
    s_cmp_lg_u32 {sR0}, 0
    s_cbranch_scc1 K2_NOW
    v_bfe_u32 v2, {vL}, 3, 2
    s_and_b32 {sT}, {sWave}, 3
    v_xor_b32 v2, {sT}, v2
    v_and_b32 v3, 3, {vL}
    v_lshlrev_b32 v3, 3, v3
    v_lshl_add_u32 v3, v2, 5, v3
    v_bfe_u32 v2, {vL}, 2, 2
    v_lshl_add_u32 v3, v2, 7, v3
    v_lshrrev_b32 v2, 4, {vL}
    v_lshl_add_u32 v3, v2, 10, v3""")
    for f in range(10):
        for u in range(2):
            A(f"    ds_read_b64_tr_b16 v[{WW+4*f+2*u}:{WW+4*f+2*u+1}], v3 offset:{f*4096+u*512}")
    A(f"""    s_cmp_lt_u32 {sWave}, 14
    s_cbranch_scc1 K2_NOW
    s_cmp_eq_u32 {sWave}, 15
    s_cselect_b32 {sRem}, 0x80000000, 0
    s_cselect_b32 {sT}, 384, 0
    s_movk_i32 {sT2}, 256
    s_cmovk_i32 {sT2}, 128
    v_lshl_add_u32 v2, {vL}, 1, {sT}
    v_add_u32 v3, {sT2}, v2""")
    for k in range(3):
        for d in range(4):
            A(f"    ds_read_u16 v{RAW+4*k+d}, v{2 if k < 2 else 3} offset:{RADL+640*d+(128 if k == 1 else 0)}")
    A(f"""    s_add_u32 {sT}, {sT}, {WZL}
    v_and_b32 v2, 7, {vL}
    v_mul_u32_u24 v2, 768, v2
    v_lshrrev_b32 v3, 3, {vL}
    v_lshlrev_b32 v3, 4, v3
    v_add3_u32 v2, v2, v3, {sT}
    s_waitcnt lgkmcnt(0)""")
    for k in range(3):
        for d in range(4):
            A(f"    v_lshlrev_b32 v{RAW+4*k+d}, 16, v{RAW+4*k+d}")
            if k == 2: A(f"    v_xor_b32 v{RAW+4*k+d}, {sRem}, v{RAW+4*k+d}")
        A(f"    ds_write_b128 v2, v[{RAW+4*k}:{RAW+4*k+3}] offset:{128*k}")
    A(f"""K2_NOW:
    v_mov_b32 v{P+13}, 1
    s_mov_b32 {sT}, {CNTL}
    v_lshrrev_b32 v{P}, 4, {vL}            ; g
    v_lshlrev_b32 {vZw}, 9, v{P}
    v_lshlrev_b32 v{P}, 4, v{P}
    v_add_u32 v{P}, {RECL}, v{P}           ; REC + g*16
    v_and_b32 v{P+1}, 3, {vL}              ; d
    v_lshl_add_u32 {vA}, v{P+1}, 1, v{P}
    v_add_u32 {vS}, 14, v{P}
    v_bfe_u32 v{P+1}, {vL}, 2, 2
    v_lshl_add_u32 {vY}, v{P+1}, 1, v{P}
    v_add_u32 {vY}, 6, {vY}
    v_and_b32 {vCol}, 15, {vL}
    v_lshlrev_b32 {vCol}, 4, {vCol}
    v_add_u32 {vZw}, {vZw}, {vCol}         ; j*512 + n*16
    s_mov_b32 {sPos}, 0
    v_mov_b32 v{P+4}, {QW}
    v_mov_b32 v{P+5}, 16
    v_mov_b32 v{vZero+3}, 0x7fff0000""")
    for i in range(4):
        A(f"    s_waitcnt vmcnt({NE+3-i+(XW==3)})")
        if i == 3: A("    ;@STAMP 3")
        A(f"    s_mov_b64 exec, s[{MASK+2*i}:{MASK+2*i+1}]")
        A(f"    v_lshl_add_u32 v{80+i}, v{80+i}, 2, {sT}")
        A(f"    ds_add_rtn_u32 v{84+i}, v{80+i}, v{P+13}")
    A(f"""    s_mov_b64 exec, 1
    ds_write_b32 v{P+4}, v{P+5}
    s_mov_b64 exec, -1""")
    if XW == 4: xwarm()
    A(f"""\
    s_cmp_eq_u64 s[{MASK}:{MASK+1}], 0
    s_waitcnt lgkmcnt(0)
    s_barrier
    ;@STAMP 4
    ds_read_b32 v{P}, v{P+14}""")
    if NE < 4:
        A("    s_cbranch_scc1 K2_NOREC")
        for i in range(NE, 4): recload(i)
        A("K2_NOREC:")
    A(f"""    s_waitcnt lgkmcnt(0)
    v_add_u32 v{P+1}, 3, v{P}
    v_and_b32 v{P+1}, -4, v{P+1}
    v_mov_b32 v{P+2}, v{P+1}""")
    dpp_scan(f"v{P+2}")
    A(f"""    v_sub_u32 v{P+3}, v{P+2}, v{P}
    v_sub_u32 v{P+2}, v{P+2}, v{P+1}       ; base
    s_mov_b32 {sT}, {RECL}
    v_lshl_or_b32 {vBP}, v{P+1}, 16, v{P+2}
    s_cbranch_scc1 K2_NOSCAT""")
    for i in range(4):
        A(f"    ds_bpermute_b32 v{80+i}, v{80+i}, v{P+3}")
    for i in range(4):
        A(f"    s_waitcnt lgkmcnt({3-i})")
        A(f"    v_add_u32 v{80+i}, v{80+i}, v{84+i}")
        A(f"    v_lshl_add_u32 v{80+i}, v{80+i}, 4, {sT}")
    for i in range(4):
        A(f"    s_mov_b64 exec, s[{MASK+2*i}:{MASK+2*i+1}]")
        A(f"    s_waitcnt vmcnt({3-i+(XW in (3,4))})")
        A(f"    ds_write_b128 v{80+i}, v[{RAW+4*i}:{RAW+4*i+3}]")
    A(f"""    s_mov_b64 exec, -1
K2_NOSCAT:
    s_sub_u32 {sT2}, {sWave}, 13
    s_cbranch_scc1 K2_NOPAD
    v_add_u32 v{P+2}, {sT2}, v{P+2}
    v_cmp_lt_u32 vcc, v{P+2}, v{P+3}
    v_lshl_add_u32 v{P+2}, v{P+2}, 4, {sT}
    s_mov_b64 exec, vcc
    ds_write_b128 v{P+2}, v[{vZero}:{vZero+3}]
    s_mov_b64 exec, -1""")
    if XW in (1, 2):
        A(f"""    s_cmp_lt_u32 {sWave}, 14
    s_cbranch_scc1 K2_NOPAD
    s_cmp_lg_u32 {sR0}, 0
    s_cbranch_scc1 K2_NOPAD
    s_lshl_b32 {sT}, {sWave}, 7
    s_mul_i32 {sT2}, s2, {NPB*512}
    s_and_b32 {sT}, {sT}, 128
    s_add_u32 {sT}, {sT}, {sT2}
    v_min_u32 v{P}, {NPB-1}, {vL}
    v_lshl_add_u32 v{P}, v{P}, 9, {sT}
    buffer_load_dword v{P+20}, v{P}, {sX}, 0 offen""")
        if XW == 2:
            A(f"    buffer_load_dword v{P+21}, v{P}, {sX}, 0 offen offset:256")
    A(f"""K2_NOPAD:
    s_mov_b32 {sItem}, {sWave}
    s_mov_b32 {sH}, -1
    s_mov_b32 {sGC}, {QW+4}
    s_waitcnt lgkmcnt(0)
    s_barrier
    ;@STAMP 5
    ;@CLK 0
    {'s_setprio 2' if PRIO else ''}
K2_ITEM:
    v_mov_b32 v{TM}, {QW}
    v_mov_b32 v{TM+1}, 1
    v_writelane_b32 v{TM}, {sGC}, 1
    s_mov_b64 exec, 3
    ds_add_rtn_u32 {vItem}, v{TM}, v{TM+1}
    s_mov_b64 exec, -1
    s_cmp_ge_u32 {sItem}, {sNN2}
    s_cbranch_scc1 K2_DONE
    s_cmp_ge_u32 {sItem}, {sNN}
    s_cselect_b32 {sT}, 1, 0
    s_cselect_b32 {sT2}, {sNN}, 0
    s_sub_u32 {sNode}, {sItem}, {sT2}
    s_sub_u32 {sNode}, {sNode}, 1
    s_cselect_b32 {sNode}, {sNL}, {sNode}
    s_add_u32 {sPf}, {sNode}, {sN0}
    s_lshl_b32 {sPf}, {sPf}, 9
    s_lshr_b32 {sGC}, {sNode}, 4
    s_lshl2_add_u32 {sGC}, {sGC}, {CNTL+240}
    s_cmp_eq_u32 {sT}, {sH}
    v_readlane_b32 {sBP}, {vBP}, {sNode}
    s_cbranch_scc1 K2_SAMEH
    s_mov_b32 {sH}, {sT}
    ;@STAMP 6
    s_lshl_b32 {sSoff}, {sH}, 8
    {f's_mul_i32 s57, {sH}, 3200000' if CH == 1 else ''}
    v_mbcnt_lo_u32_b32 v{TM+2}, -1, 0
    s_mov_b32 {sT2}, {hex(lut(VAR,0))}
    s_cmov_b32 {sT2}, {hex(lut(VAR,1))}
    v_mbcnt_hi_u32_b32 v{TM+2}, -1, v{TM+2}
    v_and_b32 v{TM+3}, 0x70, {vCol}
    v_lshrrev_b32 v{TM+2}, 3, v{TM+2}
    v_lshlrev_b32 v{TM+2}, 2, v{TM+2}
    v_bfe_u32 {vWz}, {sT2}, v{TM+2}, 4
    v_lshl_add_u32 {vWz}, {vWz}, 7, v{TM+3}
    v_add_u32 {vWz}, {WZL}, {vWz}
K2_SAMEH:
    s_lshr_b32 {sRem}, {sBP}, 16
    s_cbranch_scc0 K2_EMPTY
    s_and_b32 {sT2}, {sRem}, 4
    s_cselect_b32 {sAm}, 0, -1
    s_add_u32 {sRem}, {sRem}, {sT2}
    s_and_b32 {sT}, {sBP}, 0xffff
    s_sub_u32 {sT}, {sT}, {sT2}
    s_lshl_b32 {sT}, {sT}, 4
    s_sub_u32 {sDelta}, {sT}, {sPos}
    s_mov_b32 {sPos}, {sT}
    s_and_b32 {sT}, {sRem}, 31
    s_cmp_eq_u32 {sT}, 8
    s_cbranch_scc1 K2_F1
    s_cmp_eq_u32 {sT}, 16
    s_cbranch_scc1 K2_F2
    s_cmp_eq_u32 {sT}, 24
    s_cbranch_scc1 K2_F3""")
    for nq in (4, 1, 2, 3):
        A(f"K2_F{nq}:")
        kstep(nq, True)
        A(f"    s_movk_i32 {sDelta}, {nq*128}")
        A(f"    s_sub_u32 {sRem}, {sRem}, {nq*8}")
        A(f"    s_cmp_eq_u32 {sRem}, 0")
        A(f"    s_cbranch_scc1 K2_EPI")
        if nq != 3:
            A(f"    s_branch K2_LOOP")
    A("K2_LOOP:")
    A(f"    s_add_u32 {sPos}, {sPos}, {sDelta}")
    kstep(4, False)
    A(f"""    s_movk_i32 {sDelta}, 512
    s_sub_u32 {sRem}, {sRem}, 32
    s_cmp_eq_u32 {sRem}, 0
    s_cbranch_scc0 K2_LOOP
K2_EPI:""")
    for t in range(8):
        A(f"    ds_read_b128 v[{RAW+4*t}:{RAW+4*t+3}], {vWz} offset:{768*t}")
    def zaddr():
        A(f"""    s_lshl_b32 {sT}, {sNode}, 11
    s_and_b32 {sT2}, {sNode}, 7
    s_lshl_b32 {sT2}, {sT2}, 5
    s_or_b32 {sT}, {sT}, {sT2}
    s_or_b32 {sT}, {sT}, {sSoff}
    v_xor_b32 v{TM}, {sT}, {vZw}""")
    zaddr()
    A(f"""    v_readfirstlane_b32 {sItem}, {vItem}
    s_cmp_eq_u32 {sR0}, 0""")
    for q in range(4):
        A(f"    s_waitcnt lgkmcnt({6-2*q})")
        for r in range(4):
            for t in (2*q, 2*q+1):
                op = "v_mul_f32" if r == 0 else "v_fmac_f32"
                A(f"    {op} v{BT+t}, v{RAW+4*t+r}, v{ACC+4*t+r}")
    A("    s_cbranch_scc0 K2_ACC")
    A("K2_NOACC:")
    for q in range(4):
        A(f"    v_cvt_pk_bf16_f32 v{AF+q}, v{BT+2*q}, v{BT+2*q+1}")
    A(f"""    ds_write_b128 v{TM}, v[{AF}:{AF+3}]
    s_branch K2_ITEM
K2_ACC:
    ds_read_b128 v[{AF}:{AF+3}], v{TM}
    s_waitcnt lgkmcnt(0)""")
    for q in range(4):
        A(f"    v_lshlrev_b32 v{TM+1}, 16, v{AF+q}")
        A(f"    v_and_b32 v{TM+2}, 0xffff0000, v{AF+q}")
        A(f"    v_add_f32 v{BT+2*q}, v{BT+2*q}, v{TM+1}")
        A(f"    v_add_f32 v{BT+2*q+1}, v{BT+2*q+1}, v{TM+2}")
    A(f"""    s_branch K2_NOACC
K2_EMPTY:
    s_waitcnt lgkmcnt(0)
    v_readfirstlane_b32 {sItem}, {vItem}
    s_cmp_eq_u32 {sR0}, 0
    s_cbranch_scc0 K2_ITEM""")
    zaddr()
    A(f"""    v_mov_b64 v[{AF}:{AF+1}], 0
    v_mov_b64 v[{AF+2}:{AF+3}], 0
    ds_write_b128 v{TM}, v[{AF}:{AF+3}]
    s_branch K2_ITEM
K2_DONE:
    {'s_setprio 0' if PRIO else ''}
    ;@STAMP 7
    ;@CLK 1
    s_add_u32 {sF0}, {sF0}, {RND}
    s_add_u32 {sR0}, {sR0}, {RND}
    s_cmp_lt_u32 {sR0}, {sTot}
    v_mbcnt_lo_u32_b32 v0, -1, 0
    v_mbcnt_hi_u32_b32 v0, -1, v0          ; lane
    s_waitcnt vmcnt(0) lgkmcnt(0)
    s_cbranch_scc0 K2_LAST
    v_mov_b32 {vL}, v0
    s_barrier
    s_branch K2_ROUND
K2_LAST:
    s_and_b32 {sT}, {sWave}, 12
    s_lshl_b32 {sNode}, {sT}, 2
    s_cmp_ge_u32 {sNode}, {sNN}
    s_cbranch_scc1 K2_END
    s_add_u32 {sT}, {sT}, {CNTL+240}
    v_mov_b32 v124, {sT}
    s_sub_u32 {sRem}, {sNN}, {sNode}
    s_min_u32 {sRem}, {sRem}, 16
    s_lshl_b32 {sRem}, {sRem}, 1
    v_and_b32 v2, 15, v0
    v_add_u32 v2, {sNode}, v2
    v_lshrrev_b32 v3, 4, v0                ; g
    v_and_b32 v4, 7, v2
    v_lshlrev_b32 v4, 1, v4
    v_xor_b32 v4, v4, v3
    v_lshlrev_b32 v4, 4, v4
    v_lshl_add_u32 v4, v2, 11, v4
    v_xor_b32 v5, 64, v4
    v_xor_b32 v6, 128, v4
    v_xor_b32 v7, 192, v4
    s_and_b32 {sT}, {sWave}, 3
    s_lshl_b32 {sT2}, {sT}, 5
    v_and_b32 v1, 15, v0
    v_lshl_add_u32 v1, v1, 4, {sT2}
    v_lshl_add_u32 v1, v3, 3, v1
    v_lshl_add_u32 v1, v2, 11, v1
    v_cmp_gt_u32 s[{MASK}:{MASK+1}], {sNN}, v2
    v_lshrrev_b32 v2, 5, v0
    v_lshl_add_u32 v2, {sT}, 2, v2
    v_and_b32 v3, 31, v0
    v_add_u32 v3, v3, v2
    v_add_u32 v2, {sNode}, v2
    v_lshlrev_b32 v3, 4, v3
    v_lshl_add_u32 v3, v2, 11, v3
    v_cmp_gt_u32 s[{MASK+2}:{MASK+3}], {sNN}, v2
    v_add_u32 v2, 2, v2
    v_cmp_gt_u32 s[{MASK+4}:{MASK+5}], {sNN}, v2
    s_lshl2_add_u32 {sT}, {sT}, {sNode}
    s_add_u32 {sT}, {sT}, {sN0}
    s_lshl_b32 {sT}, {sT}, 9
    v_lshl_add_u32 v0, v0, 4, {sT}
    v_mov_b32 v2, 1
K2_WAITG:
    ds_read_b32 v125, v124
    s_waitcnt lgkmcnt(0)
    v_readfirstlane_b32 {sT}, v125
    s_cmp_lt_u32 {sT}, {sRem}
    s_cbranch_scc1 K2_WAITG
    ;@STAMP 8""")
    terms = [(0, 0, 0), (1, 4, 2), (2, 8, 2), (3, 12, 2),
             (0, 5, 1), (1, 1, 3), (2, 2, 3), (3, 3, 3),
             (0, 10, 1), (1, 11, 4), (2, 13, 4), (3, 6, 4),
             (0, 15, 1), (1, 14, 4), (2, 7, 4), (3, 9, 4)]
    seq = [(c, jk, blk, s) for s in range(2) for (c, jk, blk) in terms]
    seq = seq[:25] + [seq[28]] + seq[25:28] + seq[29:]
    NS = len(seq)
    OUT = 8
    ZR = 64
    NBUF = 14
    started = set()
    CA = 124
    def arrive():
        A(f"""    s_mov_b64 exec, 1
    ds_add_u32 v{CA}, v2
    s_mov_b64 exec, -1
    s_add_u32 {sRem}, {sRem}, 4""")
    def zread(k):
        c, zb, blk, s = seq[k]
        r = ZR + 4 * (k % NBUF)
        A(f"    ds_read_b128 v[{r}:{r+3}], v{4+(zb&1)*2+s} offset:{(zb>>1)*256}")
    for k in range(NBUF):
        zread(k)
    for k in range(NS):
        c, zb, blk, s = seq[k]
        issued = min(NS, k + NBUF)
        A(f"    s_waitcnt lgkmcnt({issued-k-1+(1 if k+NBUF >= NS else 0)})")
        r = ZR + 4 * (k % NBUF)
        w = WW + 4 * (blk * 2 + s)
        cc = f"v[{OUT+4*c}:{OUT+4*c+3}]" if c in started else "0"
        started.add(c)
        A(f"    v_mfma_f32_16x16x32_bf16 v[{OUT+4*c}:{OUT+4*c+3}], v[{w}:{w+3}], v[{r}:{r+3}], {cc}")
        if k + NBUF < NS:
            zread(k + NBUF)
            if k + NBUF == NS - 1: arrive()
    G = 120; O = 24
    def waitg(lbl):
        A(f"""{lbl}:
    ds_read_b32 v{CA+1}, v{CA}
    s_waitcnt lgkmcnt(0)
    v_readfirstlane_b32 {sT}, v{CA+1}
    s_cmp_lt_u32 {sT}, {sRem}
    s_cbranch_scc1 {lbl}""")
    A(f"    s_mov_b32 {sT}, 0xbfb8aa3b")
    for r in range(4):
        A(f"    v_mul_f32 v{G+r}, {sT}, v{OUT+r}")
    for r in range(4):
        A(f"    v_exp_f32 v{G+r}, v{G+r}")
    A(f"    v_cvt_pk_bf16_f32 v{O}, v{OUT}, v{OUT+1}")
    for r in range(4):
        A(f"    v_add_f32 v{G+r}, 1.0, v{G+r}")
    for r in range(4):
        A(f"    v_rcp_f32 v{G+r}, v{G+r}")
    A(f"    v_cvt_pk_bf16_f32 v{O+1}, v{OUT+2}, v{OUT+3}")
    for c in range(1, 4):
        for r in range(4):
            A(f"    v_mul_f32 v{OUT+4*c+r}, v{OUT+4*c+r}, v{G+r}")
        A(f"    v_cvt_pk_bf16_f32 v{O+2*c}, v{OUT+4*c}, v{OUT+4*c+1}")
        A(f"    v_cvt_pk_bf16_f32 v{O+1+2*c}, v{OUT+4*c+2}, v{OUT+4*c+3}")
    waitg("K2_WAITR")
    A(f"    s_mov_b64 exec, s[{MASK}:{MASK+1}]")
    for c in range(4):
        A(f"    ds_write_b64 v1, v[{O+2*c}:{O+1+2*c}] offset:{128*c}")
    arrive()
    waitg("K2_WAITX")
    A(f"""    ds_read_b128 v[8:11], v3
    ds_read_b128 v[12:15], v3 offset:{2*2048+32}
    s_mov_b64 exec, s[{MASK+2}:{MASK+3}]
    s_cbranch_execz K2_OUT
    s_waitcnt lgkmcnt(1)
    global_store_dwordx4 v0, v[8:11], s[6:7] {OPOL}
    s_mov_b64 exec, s[{MASK+4}:{MASK+5}]
    s_cbranch_execz K2_OUT
    s_waitcnt lgkmcnt(0)
    global_store_dwordx4 v0, v[12:15], s[6:7] offset:1024 {OPOL}
K2_OUT:""")
    if STAMPS:
        A(f"""    ;@STAMP 9
    s_waitcnt vmcnt(0)
    ;@STAMP 10
    ;@STAMPOUT 1 {sWS} {sWave}""")
    A("""K2_END:
    s_endpgm""")

def kd(name, vgpr, sgpr):
    A(".p2align 6")
    A(f""".amdhsa_kernel {name}
  .amdhsa_next_free_vgpr {vgpr}
  .amdhsa_next_free_sgpr {sgpr}
  .amdhsa_accum_offset {(vgpr+3)//4*4}
  .amdhsa_group_segment_fixed_size 0
  .amdhsa_kernarg_size 96
  .amdhsa_user_sgpr_count 2
  .amdhsa_user_sgpr_kernarg_segment_ptr 1
  .amdhsa_system_sgpr_workgroup_id_x 1
  .amdhsa_float_denorm_mode_32 3
.end_amdhsa_kernel""")

A(HEADER)
A(f"; @launch kernel=bin_kernel grid=(256,1,1) block=({K1_THR},1,1) lds={K1_LDS}")
A(f"; @launch kernel=agg_kernel grid=(256,1,1) block=(1024,1,1) lds={K2_LDS}")
A('.amdgcn_target "amdgcn-amd-amdhsa--gfx950"')
A(".text")
A(".globl bin_kernel")
A(".globl agg_kernel")
gen_k1()
gen_k2()
A('.section .rodata,"a"')
kd("bin_kernel", 64, 88 if STAMPS else 32)
kd("agg_kernel", 128, 88 if STAMPS else 64)
out = sys.argv[1] if len(sys.argv) > 1 else "standalone__tensor_product_equiv_equiformer__graph.s"
open(out, "w").write("\n".join(L) + "\n")
print("wrote", out, len(L), "lines")
```

```python
import sys

N = 12500; E = 800000; CHUNK = 3200; NCH = 250; NB = 256; NPB = 49
REC_OFF = 0
BYT_OFF = 256 * CHUNK * 16
TAB_OFF = BYT_OFF + 256 * CHUNK + 8192

L = []
def A(s=""):
    for ln in s.split("\n"):
        t = ln.strip()
        if t.startswith(";@STAMPOUT"):
            _, k, ws, wv = t.split()
            stamp_out(int(k), ws, wv)
        elif t.startswith(";@CLK"):
            if STAMPS:
                L.append("    s_waitcnt lgkmcnt(0)\n    s_memtime s[62:63]\n    s_waitcnt lgkmcnt(0)")
                L.append("    s_sub_u32 s79, s62, s79" if t.split()[1] == "1" else "    s_mov_b32 s79, s62")
        elif t.startswith(";@STAMP"):
            stamp(int(t.split()[1]))
        else:
            L.append(ln)

HEADER = """; Kernarg layout for this problem (96 bytes, ptrs only, base s[0:1]):
; destination node, aggregates with MFMA, applies the radial weights, the two linear maps and the gate."""

import os
STAMPS = os.environ.get("STAMPS") == "1"
STAMP_OFF = 32 << 20
def opt(name, dflt):
    return os.environ.get(name, dflt)
NT = opt("NT", "nt"); SC = opt("SC", "sc1"); PF = int(opt("PF", "0")); XW = int(opt("XW", "0")); OPOL = opt("OPOL", "sc0 sc1"); WWARM = int(opt("WWARM", "1")); PRIO = int(opt("PRIO", "1")); NE = int(opt("NE", "3")); SPF = int(opt("SPF", "1")); K16 = int(opt("K16", "1")); RPOL = opt("RPOL", ""); KC = int(opt("KC", "0")); XPOL = opt("XPOL", ""); XWN = int(opt("XWN", "782")); CH = int(opt("CH", "0")); GPOL = opt("GPOL", ""); TPOL = opt("TPOL", ""); EXP = int(opt("EXP", "0")); SOA = int(opt("SOA", "0")); CO = int(opt("CO", "1")); DF = int(opt("DF", "1")); XR = int(opt("XR", "0")); XRW = int(opt("XRW", "13")); IW = int(opt("IW", "10")); IWS = int(opt("IWS", "288")); IWM = int(opt("IWM", "1")); SMF = int(opt("SMF", "0")); PR = int(opt("PR", "0")); PK = int(opt("PK", "33")); F2 = int(opt("F2", "1")); PLAN = opt("PLAN", "0x4123"); E3 = int(opt("E3", "0")); E1 = int(opt("E1", "0")); E4 = int(opt("E4", "0")); XS = int(opt("XS", "2")); XSM = int(opt("XSM", "0"))
def stamp(i):
    if STAMPS:
        A(f"""    s_waitcnt lgkmcnt(0)
    s_memrealtime s[62:63]
    s_waitcnt lgkmcnt(0)
    s_mov_b32 s{64+i}, s62""")
def stamp_out(kidx, ws, wavereg):
    if STAMPS:
        A(f"""    s_mov_b64 exec, 1
    s_lshl_b32 s62, s2, 4
    s_add_u32 s62, s62, {wavereg}
    s_lshl_b32 s62, s62, 6
    s_add_u32 s62, s62, {STAMP_OFF + kidx*(1<<20)}
    v_mov_b32 v60, s62""")
        for i in range(16):
            A(f"    v_mov_b32 v61, s{64+i}")
            A(f"    global_store_dword v60, v61, {ws} offset:{4*i}")

def dpp_scan(v):
    for sh in (1, 2, 4, 8):
        A("    s_nop 1")
        A(f"    v_add_u32_dpp {v}, {v}, {v} row_shr:{sh} row_mask:0xf bank_mask:0xf")
    A("    s_nop 1")
    A(f"    v_add_u32_dpp {v}, {v}, {v} row_bcast:15 row_mask:0xa bank_mask:0xf")
    A("    s_nop 1")
    A(f"    v_add_u32_dpp {v}, {v}, {v} row_bcast:31 row_mask:0xc bank_mask:0xf")

K1_STG = 0; K1_BYT = 51200; K1_CNT = 54400; K1_BASE = 55424; K1_LDS = 56448
K1_THR = 1024 if PF else 832

def gen_k1():
    K1CH = f"s_mul_i32 s3, s2, {CHUNK//4}"
    K1AD = """v_add_u32 v1, s3, v0
    v_lshlrev_b32 v2, 4, v1
    v_lshlrev_b32 v3, 5, v1
    v_mul_u32_u24 v28, 24, v1"""
    if CO:
        K1AD = """v_and_b32 v1, 31, v0
    v_add_lshl_u32 v2, s3, v0, 1
    v_sub_u32 v1, v2, v1
    v_lshlrev_b32 v2, 3, v1
    v_lshlrev_b32 v3, 4, v1
    v_mul_u32_u24 v28, 12, v1"""
    K1LD = f"""global_load_dwordx4 v[4:7], v2, s[10:11] {NT}           ; dst
    s_barrier
    {'' if SOA else f'global_load_dwordx4 v[8:11], v2, s[8:9] {NT}            ; src'}
    global_load_dwordx4 v[12:15], v3, s[6:7] {NT}           ; e_attr
    global_load_dwordx4 v[16:19], v3, s[6:7] offset:16 {NT}
    {'s_barrier' if SOA == 2 else ''}
    {f'global_load_dwordx4 v[8:11], v2, s[8:9] {NT}            ; src' if SOA else ''}
    global_load_dwordx3 v[20:22], v28, s[4:5] {NT}          ; rhat
    global_load_dwordx3 v[24:26], v28, s[4:5] offset:12 {NT}"""
    if CO:
        K1LD = f"""global_load_dwordx2 v[4:5], v2, s[10:11] {NT}           ; dst
    global_load_dwordx2 v[6:7], v2, s[10:11] offset:256 {NT}
    s_barrier
    global_load_dwordx2 v[8:9], v2, s[8:9] {NT}             ; src
    global_load_dwordx2 v[10:11], v2, s[8:9] offset:256 {NT}
    global_load_dwordx4 v[12:15], v3, s[6:7] {NT}           ; e_attr
    global_load_dwordx4 v[16:19], v3, s[6:7] offset:512 {NT}
    global_load_dwordx3 v[20:22], v28, s[4:5] {NT}          ; rhat
    global_load_dwordx3 v[24:26], v28, s[4:5] offset:384 {NT}"""
    if KC:
        K1CH = f"""s_and_b32 s3, s2, 7
    s_min_u32 s24, s3, 2
    s_mul_i32 s3, s3, 31
    s_add_u32 s3, s3, s24
    s_lshr_b32 s24, s2, 3
    s_add_u32 s3, s3, s24
    s_mul_i32 s3, s3, {CHUNK//4}"""
    A(".p2align 8")
    A(".type bin_kernel,@function")
    A("bin_kernel:")
    A(f"""    s_cmp_ge_u32 s2, 256
    s_cbranch_scc1 K1_END
    s_load_dwordx4 s[4:7], s[0:1], 8
    s_load_dwordx4 s[8:11], s[0:1], 24
    s_load_dwordx2 s[18:19], s[0:1], 88    ; ws
    v_readfirstlane_b32 s23, v0""")
    if PF:
        A("""    s_cmp_ge_u32 s23, 832
    s_cbranch_scc1 K1_PF""")
    A(f"""    s_cmp_ge_u32 s2, {NCH}
    s_cbranch_scc1 {'K1_W' if WWARM else 'K1_END'}
    ;@STAMP 0
    {K1CH}
    {K1AD}
    v_and_b32 v29, 255, v0
    v_lshlrev_b32 v29, 2, v29
    v_mov_b32 v30, 0
    ds_write_b32 v29, v30 offset:{K1_CNT}
    v_cmp_gt_u32 vcc, {CHUNK//4}, v0
    s_mov_b64 s[20:21], vcc
    s_mov_b64 exec, vcc
    s_waitcnt lgkmcnt(0)
    {K1LD}
    v_mov_b32 v30, 1
    s_movk_i32 s22, -{NPB}
    s_and_b32 s24, s2, 7
    s_lshl_b32 s24, s24, 5
    s_lshr_b32 s25, s2, 3
    s_add_u32 s26, s24, s25
    s_waitcnt vmcnt({6 if CO else 5})
    ;@STAMP 1""")
    for i in range(4):
        A(f"    v_mul_u32_u24 v{32+i}, 21400, v{4+i}")
    for i in range(4):
        A(f"    v_lshrrev_b32 v{32+i}, 20, v{32+i}          ; bucket")
    for i in range(4):
        A(f"    v_mad_i32_i24 v{4+i}, v{32+i}, s22, v{4+i}")
    for i in range(4):
        A(f"    v_lshlrev_b32 v{32+i}, 2, v{32+i}")
        A(f"    ds_add_rtn_u32 v{36+i}, v{32+i}, v30 offset:{K1_CNT}")
    A(f"""    s_mov_b64 exec, -1
    v_and_b32 v1, 63, v0
    v_lshlrev_b32 v2, 4, v1
    s_waitcnt lgkmcnt(0)
    s_barrier
    ;@STAMP 2
    ds_read_b128 v[40:43], v2 offset:{K1_CNT}
    s_waitcnt lgkmcnt(0)
    v_add_u32 v45, v40, v41
    v_add_u32 v46, v45, v42
    v_add_u32 v47, v46, v43
    v_mov_b32 v48, v47""")
    dpp_scan("v48")
    A(f"""    v_sub_u32 v52, v48, v47
    v_add_u32 v53, v52, v40
    v_add_u32 v54, v52, v45
    v_add_u32 v55, v52, v46
    ds_write_b128 v2, v[52:55] offset:{K1_BASE}
    s_mov_b64 exec, s[20:21]
    s_waitcnt lgkmcnt(0)""")
    for i in range(4):
        A(f"    ds_read_b32 v{32+i}, v{32+i} offset:{K1_BASE}")
    A(f"""    s_cmp_lt_u32 s23, 768
    s_cbranch_scc1 K1_NOTAB
    s_mov_b64 exec, -1
    s_lshl_b32 s24, s26, 2
    s_add_u32 s24, s24, {TAB_OFF}
    v_lshlrev_b32 v44, 12, v1
    v_add_u32 v44, s24, v44
    s_mul_i32 s24, s26, {CHUNK}""")
    for i in range(4):
        A(f"    v_lshlrev_b32 v{56+i}, 20, v{40+i}")
        A(f"    v_add3_u32 v{56+i}, v{56+i}, v{52+i}, s24")
        if EXP != 2: A(f"    global_store_dword v44, v{56+i}, s[18:19] offset:{1024*i} {TPOL}")
    if EXP == 2:
        A(f"""    s_lshl_b32 s24, s26, 10
    s_add_u32 s24, s24, {TAB_OFF}
    v_lshl_add_u32 v44, v1, 4, s24
    global_store_dwordx4 v44, v[56:59], s[18:19] sc1""")
    if SOA:
        A(f"""    s_mov_b64 exec, s[20:21]
    s_waitcnt vmcnt(7)
    s_branch K1_TABDONE
K1_NOTAB:
    s_waitcnt vmcnt(3)
K1_TABDONE:
    ;@STAMP 3
    s_waitcnt lgkmcnt(0)""")
        for i in range(4):
            A(f"    v_add_u32 v{32+i}, v{32+i}, v{36+i}")
            A(f"    v_lshlrev_b32 v{36+i}, 3, v{32+i}")
            A(f"    ds_write_b64 v{36+i}, v[{12+2*i}:{13+2*i}]")
            A(f"    ds_write_b8 v{32+i}, v{4+i} offset:{K1_BYT}")
        A(f"""    v_lshlrev_b32 v2, 4, v0
    s_mul_i32 s24, s26, {CHUNK*16}
    s_mul_i32 s25, s26, {CHUNK}
    s_add_u32 s25, s25, {BYT_OFF}
    v_add_u32 v3, s24, v2
    v_add_u32 v4, {1*12800}, v3
    v_add_u32 v5, {2*12800}, v3
    v_add_u32 v6, {3*12800}, v3
    v_add_u32 v7, s25, v2
    s_waitcnt lgkmcnt(0)
    s_barrier
    ds_read_b128 v[40:43], v2
    ds_read_b128 v[44:47], v2 offset:12800
    s_mov_b32 s24, 0x05040100
    s_waitcnt lgkmcnt(1)
    global_store_dwordx4 v3, v[40:43], s[18:19] {SC}
    s_waitcnt lgkmcnt(0)
    global_store_dwordx4 v4, v[44:47], s[18:19] {SC}
    s_cmp_lt_u32 s23, 256
    s_cbranch_scc0 K1_NOBYT
    v_cmp_gt_u32 vcc, {CHUNK//16}, v0
    s_mov_b64 exec, vcc
    ds_read_b128 v[48:51], v2 offset:{K1_BYT}
    s_waitcnt lgkmcnt(0)
    global_store_dwordx4 v7, v[48:51], s[18:19] {SC}
    s_mov_b64 exec, -1
    s_waitcnt vmcnt(3)
    s_branch K1_Y
K1_NOBYT:
    s_cmp_lt_u32 s23, 768
    s_waitcnt vmcnt(6)
    s_cbranch_scc0 K1_Y
    s_waitcnt vmcnt(2)
K1_Y:
    ;@STAMP 4
    v_alignbit_b32 v28, v22, v21, 16
    v_alignbit_b32 v29, v9, v22, 16
    v_perm_b32 v21, v8, v21, s24
    v_alignbit_b32 v30, v26, v25, 16
    v_alignbit_b32 v31, v11, v26, 16
    v_perm_b32 v25, v10, v25, s24""")
        for i, y in enumerate([20, 28, 24, 30]):
            A(f"    ds_write_b64 v{36+i}, v[{y}:{y+1}] offset:25600")
        A(f"""    s_waitcnt lgkmcnt(0)
    s_barrier
    ds_read_b128 v[8:11], v2 offset:25600
    ds_read_b128 v[12:15], v2 offset:38400
    s_waitcnt lgkmcnt(1)
    global_store_dwordx4 v5, v[8:11], s[18:19] {SC}
    s_waitcnt lgkmcnt(0)
    global_store_dwordx4 v6, v[12:15], s[18:19] {SC}""")
    else:
        A(f"""    s_mov_b64 exec, s[20:21]
    s_waitcnt vmcnt({1 if EXP == 2 else 4})
    s_branch K1_TABDONE
K1_NOTAB:
    s_waitcnt vmcnt(0)
K1_TABDONE:
    ;@STAMP 3
    s_mov_b32 s24, 0x05040100
    v_alignbit_b32 v28, v22, v21, 16
    v_alignbit_b32 v29, v9, v22, 16
    v_perm_b32 v21, v8, v21, s24
    v_alignbit_b32 v30, v26, v25, 16
    v_alignbit_b32 v31, v11, v26, 16
    v_perm_b32 v25, v10, v25, s24
    s_waitcnt lgkmcnt(0)""")
        ypair = [20, 28, 24, 30]
        for i in range(4):
            A(f"    v_add_u32 v{32+i}, v{32+i}, v{36+i}")
            A(f"    v_lshlrev_b32 v{36+i}, 4, v{32+i}")
            A(f"    ds_write2_b64 v{36+i}, v[{12+2*i}:{13+2*i}], v[{ypair[i]}:{ypair[i]+1}] offset0:0 offset1:1")
            A(f"    ds_write_b8 v{32+i}, v{4+i} offset:{K1_BYT}")
        A(f"""    v_lshlrev_b32 v2, 4, v0
    s_mul_i32 s24, s26, {CHUNK*16}
    s_mul_i32 s25, s26, {CHUNK}
    s_add_u32 s25, s25, {BYT_OFF}
    v_add_u32 v3, s24, v2
    v_add_u32 v4, {1*12800}, v3
    v_add_u32 v5, {2*12800}, v3
    v_add_u32 v6, {3*12800}, v3
    v_add_u32 v7, s25, v2
    s_waitcnt lgkmcnt(0)
    s_barrier
    ;@STAMP 4""")
        for i in range(4):
            A(f"    ds_read_b128 v[{8+4*i}:{11+4*i}], v2 offset:{12800*i}")
        for i in range(4):
            A(f"    s_waitcnt lgkmcnt({3-i})")
            A(f"    global_store_dwordx4 v{3+i}, v[{8+4*i}:{11+4*i}], s[18:19] {SC}")
        A(f"""    v_cmp_gt_u32 vcc, {CHUNK//16}, v0
    s_and_b64 exec, exec, vcc
    s_cbranch_execz K1_NOBYT
    ds_read_b128 v[24:27], v2 offset:{K1_BYT}
    s_waitcnt lgkmcnt(0)
    global_store_dwordx4 v7, v[24:27], s[18:19] {SC}
K1_NOBYT:""")
    if PF == 5: A("    s_barrier")
    if STAMPS:
        A("""    ;@STAMP 5
    s_waitcnt vmcnt(0)
    ;@STAMP 6
    s_lshr_b32 s23, s23, 6
    ;@STAMPOUT 0 s[18:19] s23
    s_lshl_b32 s23, s23, 6""")
    if IWM == 0: A(";@WALK")
    A("    s_endpgm")
    if WWARM:
        A(f"""K1_W:
    s_load_dwordx4 s[12:15], s[0:1], 40
    s_load_dwordx2 s[16:17], s[0:1], 56    ; w_si1
    s_cmp_ge_u32 s23, 192
    s_cbranch_scc1 {'K1_WALK' if IWM == 1 else 'K1_END'}
    v_lshlrev_b32 v1, 7, v0
    v_min_u32 v2, 16256, v1
    v_min_u32 v3, 2432, v1
    s_waitcnt lgkmcnt(0)
    global_load_dword v4, v1, s[16:17]
    global_load_dword v5, v2, s[14:15]
    global_load_dword v6, v3, s[12:13]
    s_endpgm""")
    if PF:
        A(f"""K1_PF:
    s_load_dwordx2 s[12:13], s[0:1], 0     ; x
    s_mov_b32 s14, {N*512}
    s_mov_b32 s15, 0x00020000
    v_subrev_u32 v1, 832, v0               ; 0..191
    v_lshrrev_b32 v2, 1, v1
    v_and_b32 v1, 1, v1
    v_lshlrev_b32 v1, 7, v1
    v_lshl_add_u32 v1, v2, 9, v1
    s_lshr_b32 s3, s2, 3
    s_mul_i32 s3, s3, {391*512}
    s_mul_i32 s16, s2, {49*512}
    s_add_u32 s16, s16, 256
    v_add_u32 v3, s3, v1
    v_cmp_gt_u32 vcc, {NPB}, v2
    v_add_u32 v8, s16, v1
    v_mov_b32 v9, 0x7fffff00
    v_cndmask_b32 v8, v9, v8, vcc
    v_cmp_gt_u32 vcc, {391-4*96}, v2""")
        for i in range(1, 5):
            A(f"    v_add_u32 v{3+i}, {96*512*i}, v3")
        A("""    v_cndmask_b32 v7, v9, v7, vcc
    s_waitcnt lgkmcnt(0)""")
        if PF >= 3:
            A(f"""    v_subrev_u32 v1, 832, v0
    s_mul_i32 s16, s2, {49*512}
    v_cmp_gt_u32 vcc, 4, v1
    v_lshl_add_u32 v3, v1, 7, s16
    v_add_u32 v4, {192*128}, v3
    v_cndmask_b32 v4, v9, v4, vcc""")
        nb = {1: 2, 2: 1, 3: 2, 4: 1, 5: 3}[PF]
        for i in range(nb): A("    s_barrier")
        if PF == 5: A("    s_barrier")
        for i in range(6 if PF < 3 else 2):
            A(f"    buffer_load_dword v{10+i}, v{3+i}, s[12:15], 0 offen")
        for i in range(2 - nb): A("    s_barrier")
        if PF != 5: A("    s_barrier")
        A("    s_waitcnt vmcnt(0)")
        if STAMPS:
            A("""    ;@STAMP 0
    ;@STAMP 1
    ;@STAMP 2
    ;@STAMP 3
    ;@STAMP 4
    ;@STAMP 5
    ;@STAMP 6
    s_lshr_b32 s23, s23, 6
    ;@STAMPOUT 0 s[18:19] s23""")
    if IWM == 1:
        A("K1_WALK:")
        A("    s_sub_u32 s23, s23, 192")
        A(";@WALK")
    A("""K1_END:
    s_endpgm""")

ZS = 2048
ZEND = NPB * ZS
WZL = ZEND
CNTL = WZL + 6144
assert CNTL % 256 == 0
QW = CNTL + 256
RECL = QW + 16
K2_LDS = 163840
RND = (K2_LDS - RECL) // 16 - NPB * 3
SCR = RECL
WST = 0
RADL = 40960

vA, vY, vS, vCol, vZw, vWz, vBP, vItem = [f"v{i}" for i in range(8)]
TM = 8; AF = 12; BT = 16; WW = 24; RAW = 64; ACC = 96
sX = "s[8:11]"
sWS = "s[12:13]"
sN0 = "s14"; sNN = "s15"; sWave = "s16"; sF0 = "s17"; sTot = "s18"; sPos = "s19"; sDelta = "s20"
sItem = "s21"; sH = "s22"; sNode = "s23"; sBP = "s24"; sRem = "s25"; sSelLo = "s26"; sSelHi = "s27"
sT = "s28"; sT2 = "s29"; sNN2 = "s30"; sSoff = "s31"; sB = "s3"; sR0 = "s50"; sLim = "s51"; sAm = "s52"; sGC = "s53"; sNL = "s54"; sSc = "s55"; sPf = "s56"
MASK = 32
sJM = "s[40:41]"
sBYT = "s[42:43]"
sRAD = "s[44:45]"; sW0 = "s[46:47]"; sW1 = "s[48:49]"
BLK = [0, 5, 6, 7, 2, 1, 10, 9, 3, 10, 1, 8, 4, 9, 8, 1]
VAR = [0, 3, 3, 3, 2, 1, 4, 5, 2, 5, 1, 4, 2, 4, 5, 1]
def lut(tab, h):
    v = 0
    for j in range(4):
        for b in range(2):
            v |= tab[4*j + 2*h + b] << (4 * (2*j + b))
    return v

SB = 60000
def kstep(nq, first):
    n = 2 * nq
    smf = SMF and not first
    YR = [AF, AF+1, AF+2, AF+3, TM, TM+1, TM+2, TM+3]
    raw = (lambda i: RAW + 8 * (i & 3) + 4 * (i >> 2)) if smf else (lambda i: RAW + 4 * i)
    sreg = lambda i: (TM if (first and i == 0) else raw(i))
    if SMF:
        A(f"    v_add_u32_sdwa v{TM+3}, {sPos}, {vS} dst_sel:DWORD dst_unused:UNUSED_PAD src0_sel:DWORD src1_sel:WORD_{1 if smf else 0}")
    else:
        A(f"    v_add_u32 {vS}, {sDelta}, {vS}")
    A(f"    v_add_u32 {vA}, {sDelta}, {vA}")
    for i in range(n):
        if SMF:
            A(f"    ds_read_u16 v{sreg(i)}, v{TM+3} offset:{SB + (64*(i&3) + 32*(i>>2) if smf else 64*i)}")
        else:
            A(f"    ds_read_u16 v{sreg(i)}, {vS} offset:{64*i}")
    na = min(n, 6)
    for i in range(na):
        A(f"    ds_read_u16_d16_hi v{BT+i}, {vA} offset:{64*i}")
    A(f"    v_add_u32 {vY}, {sDelta}, {vY}")
    if first:
        A(f"    v_mov_b64 v[{RAW}:{RAW+1}], 0")
        A(f"    v_mov_b64 v[{RAW+2}:{RAW+3}], 0")
        A(f"    s_cmp_eq_u32 {sAm}, 0")
    for i in range(n):
        if i % 2 == 0:
            A(f"    s_waitcnt lgkmcnt({n-2-i+na})")
        if first and i == 0:
            A(f"    s_cbranch_scc1 K2_SK{nq}")
        A(f"    v_lshl_add_u32 v{sreg(i)}, v{sreg(i)}, {8 if CH == 1 else 9}, {'v127' if CH == 2 else vCol}")
        A(f"    buffer_load_dwordx4 v[{raw(i)}:{raw(i)+3}], v{sreg(i)}, {sX}, {'s57' if CH else sSoff} offen {GPOL}")
        if first and i == 0:
            A(f"K2_SK{nq}:")
    for i in range(na, n):
        A(f"    ds_read_u16_d16_hi v{BT+i}, {vA} offset:{64*i}")
    A(f"    s_mov_b64 exec, {sJM}")
    for i in range(n):
        A(f"    ds_read_u16_d16_hi v{YR[i]}, {vY} offset:{64*i}")
    A("    s_waitcnt lgkmcnt(0)")
    for i in range(n):
        A(f"    v_mul_f32 v{BT+i}, v{BT+i}, v{YR[i]}")
    A(f"    s_mov_b64 exec, -1")
    if first:
        A(f"    v_and_b32 v{BT}, {sAm}, v{BT}")
        if SPF:
            A(f"    s_buffer_load_dwordx2 s[58:59], {sX}, {sPf} offset:{256+60}")
            A(f"    s_buffer_load_dwordx2 s[58:59], {sX}, {sPf} offset:{384+60}")
        if PR:
            A(f"    s_sub_u32 {sT}, {sItem}, {PK}")
            A(f"    s_cmp_lt_u32 {sT}, {NPB-PK}")
            A(f"    s_cbranch_scc0 K2_NP{nq}")
            A(f"    s_mul_i32 {sT}, {sT}, {PR*512}")
            A(f"    s_add_u32 {sT}, {sT}, s60")
            for r in range(PR):
                A(f"    s_buffer_load_dwordx2 s[58:59], {sX}, {sT} offset:{512*r+256+60}")
                A(f"    s_buffer_load_dwordx2 s[58:59], {sX}, {sT} offset:{512*r+384+60}")
            A(f"K2_NP{nq}:")
    for q in range(nq):
        A(f"    v_cvt_pk_bf16_f32 v{AF+q}, v{BT+2*q}, v{BT+2*q+1}")
    if smf:
        A(f"    v_mov_b32 v{TM}, 0xdddd8888")
        def swaps(prs, blks):
            for b in blks:
                for (r, c) in prs:
                    A(f"    v_swap_b32 v{RAW+8*r+4*b+c}, v{RAW+8*c+4*b+r}")
        def sm(t):
            A(f"    v_smfmac_f32_16x16x64_bf16 v[{ACC+4*t}:{ACC+4*t+3}], v[{AF}:{AF+3}], v[{RAW+8*(t>>1)}:{RAW+8*(t>>1)+7}], v{TM}{' abid:1' if t & 1 else ''}")
        A("    s_waitcnt vmcnt(4)")
        swaps([(0,1),(0,2),(0,3),(1,2),(1,3),(2,3)], [0])
        A("    s_waitcnt vmcnt(0)")
        swaps([(0,1),(0,2),(0,3),(1,2),(1,3)], [1])
        sm(0)
        swaps([(2,3)], [1])
        for t in range(1, 8): sm(t)
        return
    k16 = K16 and nq <= 2
    W = 2 if k16 else 4
    q = nq
    while q < W:
        if q % 2 == 0:
            for b in (AF, BT, BT+4):
                A(f"    v_mov_b64 v[{b+q}:{b+q+1}], 0")
            q += 2
        else:
            for b in (AF, BT, BT+4):
                A(f"    v_mov_b32 v{b+q}, 0")
            q += 1
    A("    s_waitcnt vmcnt(0)")
    def perms(t):
        b = BT + 4 * (t & 1)
        sel = sSelHi if (t & 1) else sSelLo
        for q in range(nq):
            A(f"    v_perm_b32 v{b+q}, v{RAW+4*(2*q+1)+(t>>1)}, v{RAW+4*(2*q)+(t>>1)}, {sel}")
    def mfma(t):
        b = BT + 4 * (t & 1)
        c = "0" if first else f"v[{ACC+4*t}:{ACC+4*t+3}]"
        op = "v_mfma_f32_16x16x16_bf16" if k16 else "v_mfma_f32_16x16x32_bf16"
        A(f"    {op} v[{ACC+4*t}:{ACC+4*t+3}], v[{AF}:{AF+W-1}], v[{b}:{b+W-1}], {c}")
    perms(0)
    for t in range(8):
        if t < 7:
            perms(t + 1)
            if nq == 1 and t == 0:
                A("    s_nop 0")
        else:
            A("    s_nop 0")
        mfma(t)

def final2():
    sG = sBP; sPlan = sDelta; sTile = sPos
    OUT = 96; O = 112; G = 120; CA = 124
    A(f"""    s_and_b32 {sTile}, {sWave}, 3
    s_lshl2_add_u32 {sT}, {sTile}, {CNTL+208}
    v_mov_b32 v{CA}, {sT}
    v_mov_b32 v2, 1
    s_mov_b64 exec, 1
    ds_add_rtn_u32 v{CA+1}, v{CA}, v2
    s_mov_b64 exec, -1
    v_and_b32 v1, 15, v0
    v_lshrrev_b32 v3, 4, v0                ; g
    v_and_b32 v5, 7, v0
    v_lshlrev_b32 v4, 1, v5
    v_xor_b32 v4, v4, v3
    v_lshlrev_b32 v4, 4, v4
    v_lshl_add_u32 v8, v1, 11, v4
    s_lshl_b32 {sT2}, {sTile}, 5
    v_lshl_add_u32 v5, v5, 4, {sT2}
    v_lshl_add_u32 v5, v3, 3, v5
    v_lshl_add_u32 v9, v1, 11, v5
    v_lshrrev_b32 v3, 5, v0
    v_lshl_add_u32 v3, {sTile}, 2, v3
    v_and_b32 v4, 7, v3
    v_and_b32 v5, 7, v0
    v_add_lshl_u32 v4, v4, v5, 4
    v_bfe_u32 v5, v0, 3, 2
    v_lshl_add_u32 v4, v5, 9, v4
    v_lshl_add_u32 v10, v3, 11, v4
    s_lshl2_add_u32 {sT}, {sTile}, {sN0}
    s_lshl_b32 {sT}, {sT}, 9
    v_lshl_add_u32 v0, v0, 4, {sT}
    s_waitcnt lgkmcnt(0)
    v_readfirstlane_b32 {sT}, v{CA+1}
    s_lshl_b32 {sT}, {sT}, 2
    s_lshr_b32 {sG}, {PLAN}, {sT}
    s_and_b32 {sG}, {sG}, 7
K2_TASK:
    s_lshl_b32 {sNode}, {sG}, 4
    s_sub_u32 {sRem}, {sNN}, {sNode}
    s_cmp_gt_i32 {sRem}, 0
    s_cbranch_scc0 K2_NEXT
    s_min_u32 {sRem}, {sRem}, 16
    s_lshl2_add_u32 {sT}, {sG}, {CNTL+224}
    v_mov_b32 v{CA}, {sT}
    s_lshl_b32 {sT}, {sG}, 15
    v_add_u32 v4, {sT}, v8
    v_xor_b32 v5, 64, v4
    v_xor_b32 v6, 128, v4
    v_xor_b32 v7, 192, v4
    v_add_u32 v11, {sT}, v9
    v_add_u32 v12, {sT}, v10
    s_lshl_b32 {sT}, {sG}, 13
    v_add_u32 v13, {sT}, v0
    v_cmp_gt_u32 s[{MASK}:{MASK+1}], {sRem}, v1
    v_cmp_gt_u32 s[{MASK+2}:{MASK+3}], {sRem}, v3
    s_sub_u32 {sT}, {sRem}, 2
    v_cmp_gt_i32 s[{MASK+4}:{MASK+5}], {sT}, v3
    s_add_u32 {sT2}, {sRem}, 4""")
    def waitc(lbl, off, lim):
        A(f"""{lbl}:
    ds_read_b32 v{CA+1}, v{CA} offset:{off}
    s_waitcnt lgkmcnt(0)
    v_readfirstlane_b32 {sT}, v{CA+1}
    s_cmp_lt_u32 {sT}, {lim}
    s_cbranch_scc1 {lbl}""")
    def arrive(off):
        A(f"""    s_mov_b64 exec, 1
    ds_add_u32 v{CA}, v2 offset:{off}
    s_mov_b64 exec, -1""")
    ZB = [64 + 4*k for k in range(8)] + [16, 20]
    NBUF = len(ZB)
    started = set()
    def half(terms, tail, fill):
        seq = [(c, zb, blk, s) for (c, zb, blk) in terms for s in range(2)]
        def zread(k):
            c, zb, blk, s = seq[k]
            r = ZB[k % NBUF]
            A(f"    ds_read_b128 v[{r}:{r+3}], v{4+(zb&1)*2+s} offset:{(zb>>1)*256}")
        for k in range(NBUF): zread(k)
        NS = len(seq)
        for k in range(NS):
            c, zb, blk, s = seq[k]
            issued = min(NS, k + NBUF)
            A(f"    s_waitcnt lgkmcnt({issued-k-1+(1 if tail and k+NBUF > NS-1+0 and k+NBUF >= NS else 0)})")
            r = ZB[k % NBUF]; w = WW + 4 * (blk * 2 + s)
            cc = f"v[{OUT+4*c}:{OUT+4*c+3}]" if c in started else "0"
            started.add(c)
            A(f"    v_mfma_f32_16x16x32_bf16 v[{OUT+4*c}:{OUT+4*c+3}], v[{w}:{w+3}], v[{r}:{r+3}], {cc}")
            if k + NBUF < NS:
                zread(k + NBUF)
                if tail and k + NBUF == NS - 1: tail()
            for f in fill.get(k, []): A(f)
    waitc("K2_WAITA", 0, sRem)
    half([(0,0,0),(1,4,2),(2,8,2),(3,12,2),(0,5,1),(1,1,3),(2,13,4),(3,9,4)], lambda: arrive(0), {})
    A(f"""K2_WAITG:
    ds_read2_b32 v[{CA+2}:{CA+3}], v{CA} offset1:4
    s_waitcnt lgkmcnt(0)
    v_add_u32 v{CA+3}, 4, v{CA+3}
    v_min_u32 v{CA+2}, v{CA+2}, v{CA+3}
    s_nop 0
    v_readfirstlane_b32 {sT}, v{CA+2}
    s_cmp_lt_u32 {sT}, {sT2}
    s_cbranch_scc1 K2_WAITG""")
    A("    ;@STAMP 8")
    A(f"    s_mov_b32 {sT}, 0xbfb8aa3b")
    gate = [f"    v_mul_f32 v{G+r}, {sT}, v{OUT+r}" for r in range(4)] + [f"    v_exp_f32 v{G+r}, v{G+r}" for r in range(4)]
    gate += [f"    v_add_f32 v{G+r}, 1.0, v{G+r}" for r in range(4)] + [f"    v_rcp_f32 v{G+r}, v{G+r}" for r in range(4)]
    gate += [f"    v_cvt_pk_bf16_f32 v{O}, v{OUT}, v{OUT+1}", f"    v_cvt_pk_bf16_f32 v{O+1}, v{OUT+2}, v{OUT+3}"]
    def fin(c):
        return [f"    v_mul_f32 v{OUT+4*c+r}, v{OUT+4*c+r}, v{G+r}" for r in range(4)] + [
            f"    v_cvt_pk_bf16_f32 v{O+2*c}, v{OUT+4*c}, v{OUT+4*c+1}", f"    v_cvt_pk_bf16_f32 v{O+1+2*c}, v{OUT+4*c+2}, v{OUT+4*c+3}"]
    fill = {7: gate[0:2], 8: gate[2:5], 9: gate[5:7], 10: gate[7:10], 11: gate[10:13], 12: gate[13:15], 13: gate[15:18], 14: fin(1)[:3], 15: fin(1)[3:]}
    half([(0,10,1),(0,15,1),(1,11,4),(1,14,4),(2,2,3),(2,7,4),(3,3,3),(3,6,4)], None, fill)
    for f in fin(2): A(f)
    A(f"    s_mov_b64 exec, s[{MASK}:{MASK+1}]")
    for c in range(3):
        A(f"    ds_write_b64 v11, v[{O+2*c}:{O+1+2*c}] offset:{512*c}")
    for f in fin(3): A(f)
    A(f"    ds_write_b64 v11, v[{O+6}:{O+7}] offset:{512*3}")
    arrive(16)
    waitc("K2_WAITX", 16, sT2)
    A(f"""    ds_read_b128 v[64:67], v12
    ds_read_b128 v[68:71], v12 offset:{2*2048+32}
    s_mov_b64 exec, s[{MASK+2}:{MASK+3}]
    s_cbranch_execz K2_NEXT
    s_waitcnt lgkmcnt(1)
    global_store_dwordx4 v13, v[64:67], s[6:7] {OPOL}
    s_mov_b64 exec, s[{MASK+4}:{MASK+5}]
    s_cbranch_execz K2_NEXT
    s_waitcnt lgkmcnt(0)
    global_store_dwordx4 v13, v[68:71], s[6:7] offset:1024 {OPOL}
K2_NEXT:
    s_mov_b64 exec, -1
    s_cmp_eq_u32 {sG}, {int(PLAN,16) & 7}
    s_mov_b32 {sG}, {6 - sum((int(PLAN,16) >> (4*i)) & 7 for i in range(3))}
    s_waitcnt lgkmcnt(0)
    s_cbranch_scc1 K2_TASK
K2_OUT:""")

def gen_k2():
    A(".p2align 8")
    A(".type agg_kernel,@function")
    A("agg_kernel:")
    P = 96
    XSA = ""
    if XS:
        if XSM == 0:
            XSA = f"""s_mul_i32 {sT}, s2, 49
    s_mul_i32 {sT2}, {sWave}, {XS}
    s_add_u32 {sT}, {sT}, {sT2}
    s_lshl_b32 {sT}, {sT}, 9
""" + "\n".join(f"    s_buffer_load_dwordx2 s[58:59], {sX}, {sT} offset:{512*r+128*u+60}" for r in range(XS) for u in range(2))
        else:
            XSA = f"""s_and_b32 {sT}, s2, -8
    s_lshr_b32 {sT2}, {sWave}, 1
    s_add_u32 {sT}, {sT}, {sT2}
    s_mul_i32 {sT}, {sT}, {CHUNK*16}
    s_and_b32 {sT2}, s2, 7
    s_lshl_b32 {sT2}, {sT2}, 1
    s_bitcmp1_b32 {sWave}, 0
    s_addc_u32 {sT2}, {sT2}, 0
    s_mul_i32 {sT2}, {sT2}, 3200
    s_add_u32 {sT}, {sT}, {sT2}
""" + "\n".join(f"    s_load_dwordx2 s[58:59], {sWS}, {sT} offset:{128*r+60}" for r in range(2*XS))
    VSI = f"v_add_u32 {vS}, 14, v{P}"
    if SMF:
        VSI = f"""v_bfe_u32 {vS}, v126, 4, 1
    v_lshrrev_b32 v{P+1}, 5, v126
    v_lshlrev_b32 v{P+1}, 4, v{P+1}
    v_lshl_add_u32 v{P+1}, {vS}, 8, v{P+1}
    v_lshl_add_u32 {vS}, v{P+1}, 16, v{P}
    v_add_u32 {vS}, {((RECL-SB+14) << 16) + 14 - SB}, {vS}"""
    vL = "v126"; vZero = 120
    A(f"""    s_cmp_ge_u32 s2, 256
    s_cbranch_scc1 K2_END
    s_load_dwordx2 {sWS}, s[0:1], 88       ; ws
    s_load_dwordx4 s[44:47], s[0:1], 40
    s_load_dwordx2 {sW1}, s[0:1], 56       ; w_si1
    s_load_dwordx2 s[8:9], s[0:1], 0       ; x
    s_load_dwordx2 s[6:7], s[0:1], 72      ; out
    ;@STAMP 0
    s_and_b32 {sB}, s2, 7
    s_lshl_b32 {sB}, {sB}, 5
    s_lshr_b32 {sT}, s2, 3
    s_add_u32 {sB}, {sB}, {sT}             ; bucket
    {f's_mul_i32 s60, {sT}, {391*512}' if PR else ''}
    v_lshrrev_b32 v1, 6, v0
    v_and_b32 {vL}, 63, v0                 ; lane
    v_readfirstlane_b32 {sWave}, v1
    s_mul_i32 {sN0}, {sB}, {NPB}
    s_sub_u32 {sNN}, {N}, {sN0}
    s_min_u32 {sNN}, {sNN}, {NPB}
    s_lshl_b32 {sNN2}, {sNN}, 1
    s_sub_u32 {sNL}, {sNN}, 1
    s_mov_b32 s10, {N*512}
    s_mov_b32 s11, 0x00020000
    s_mov_b32 {sSelLo}, 0x05040100
    s_mov_b32 {sSelHi}, 0x07060302
    s_mov_b32 s40, 0xfff0fff0
    s_mov_b32 s41, 0xfff0fff0
    s_lshl_b32 {sF0}, {sWave}, 8
    s_lshl_b32 {sB}, {sB}, 10
    s_add_u32 {sB}, {sB}, {TAB_OFF}
    s_mov_b32 {sR0}, 0
    s_waitcnt lgkmcnt(0)
    s_add_u32 s42, s12, {BYT_OFF}
    s_addc_u32 s43, s13, 0
    {'s_branch K2_OUT' if EXP else ''}
K2_ROUND:
    v_lshl_add_u32 v4, {vL}, 4, {sB}
    global_load_dwordx4 v[{P}:{P+3}], v4, {sWS}
    v_mov_b64 v[{vZero}:{vZero+1}], 0
    v_mov_b64 v[{vZero+2}:{vZero+3}], 0
    s_lshl_b32 {sSc}, {sWave}, 10
    s_add_u32 {sSc}, {sSc}, {SCR}
    v_lshl_add_u32 v3, {vL}, 4, {sSc}
    ds_write_b128 v3, v[{vZero}:{vZero+3}]           ; marks
    s_mov_b32 {sT}, {CNTL}
    v_lshl_add_u32 v{P+14}, {vL}, 2, {sT}
    ds_write_b32 v{P+14}, v{vZero}
    {XSA}
    s_sub_u32 {sT}, {sF0}, {14*256}
    s_cmp_lt_u32 {sT}, {0 if E1 else 512}
    s_cbranch_scc0 K2_NODMA
    s_cmp_lg_u32 {sR0}, 0
    s_cbranch_scc1 K2_NODMA
    s_lshl_b32 {sT}, {sT}, 2               ; 0 / 1024
    v_bfe_u32 v2, {vL}, 4, 1
    s_lshr_b32 {sT2}, {sT}, 8
    v_lshl_or_b32 v2, v2, 1, {sT2}
    v_xor_b32 v2, v2, {vL}
    v_lshl_add_u32 v2, v2, 4, {sT}
    v_lshl_add_u32 v3, {vL}, 4, {sT}
    s_add_u32 m0, {sT}, {RADL}
    v_min_u32 v4, {2560-2048-16}, v3
    global_load_lds_dwordx4 v3, {sRAD}
    global_load_lds_dwordx4 v4, {sRAD} offset:2048
    s_mov_b32 m0, {sT}""")
    for k in range(6):
        if k < 4:
            if k: A(f"    s_add_u32 m0, {sT}, {4096*k}")
            A(f"    s_nop 0")
            A(f"    global_load_lds_dwordx4 v2, {sW0}")
            A(f"    global_load_lds_dwordx4 v2, {sW0} offset:2048")
        A(f"    s_add_u32 m0, {sT}, {16384+4096*k}")
        A(f"    s_nop 0")
        A(f"    global_load_lds_dwordx4 v2, {sW1}")
        A(f"    global_load_lds_dwordx4 v2, {sW1} offset:2048")
        if k < 5: A(f"    v_add_u32 v2, 4096, v2")
    if DF:
        A("""    s_waitcnt vmcnt(22)
    s_branch K2_TAB""")
    A("K2_NODMA:")
    if XR:
        A(f"""    s_cmp_lg_u32 {sF0}, {XRW*256}
    s_cbranch_scc1 K2_NOXR
    s_and_b32 {sT}, s2, -8
    v_lshrrev_b32 v2, 3, {vL}
    v_add_u32 v2, {sT}, v2                 ; column
    v_and_b32 v3, 7, {vL}
    s_and_b32 {sT}, s2, 7
    s_mul_i32 {sT2}, {sT}, 400
    v_min_u32 v5, 3, v3
    v_lshl_add_u32 v5, v5, 7, {sT2}
    s_movk_i32 {sT2}, {CHUNK}
    v_mad_u32_u24 v5, v2, {sT2}, v5
    global_load_ubyte v127, v5, {sBYT}
    s_mul_i32 {sT}, {sT}, 6400
    s_max_u32 {sT}, {sT}, 256
    s_add_u32 {sT}, {sT}, {3072-256}
    v_lshl_add_u32 v3, v3, 7, {sT}
    s_mov_b32 {sT2}, {CHUNK*16}
    v_mad_u32_u24 v3, v2, {sT2}, v3""")
        for m in range(XR):
            A(f"    global_load_dword v127, v3, {sWS} offset:{1024*m-3072}")
        A(f"""    s_waitcnt vmcnt({XR+1})
    s_branch K2_TAB
K2_NOXR:""")
    A(f"""    s_waitcnt vmcnt(0)
K2_TAB:
    s_mov_b32 vcc_lo, 0x80800000
    s_mov_b32 vcc_hi, 0x80808080
    s_movk_i32 {sT2}, 256
    s_add_u32 {sLim}, {sR0}, {RND}
    ;@STAMP 1
    v_cndmask_b32 v{P+3}, v{P+3}, v{vZero}, vcc""")
    if E3 == 2:
        A(f"""    s_movk_i32 {sTot}, 3136
    s_movk_i32 {sLim}, 3136
    s_cmp_lt_u32 {sF0}, {sLim}
    s_cbranch_scc0 K2_NOWIN
    s_sub_u32 {sT}, {sLim}, {sF0}""")
        for i in range(1, 4): A(f"    v_add_u32 v{P+16+i}, {64*i}, {vL}")
        for i in range(4):
            A(f"    v_cmp_gt_u32 s[{MASK+2*i}:{MASK+2*i+1}], {sT}, {([vL] + [f'v{P+16+j}' for j in range(1, 4)])[i]}")
        A("    s_waitcnt lgkmcnt(0)")
        A("    s_branch K2_E3")
    for i in range(4):
        A(f"    v_lshrrev_b32 v{P+4+i}, 20, v{P+i}           ; count")
    A(f"""    v_add_u32 v{P+5}, v{P+5}, v{P+4}
    v_add_u32 v{P+6}, v{P+6}, v{P+5}
    v_add_u32 v{P+7}, v{P+7}, v{P+6}
    v_mov_b32 v{P+12}, v{P+7}""")
    fill = [f"    v_and_b32 v{P+i}, 0xfffff, v{P+i}" for i in range(4)]
    fill += [f"    v_add_u32 v{P+16+i}, {64*i}, {vL}" for i in range(1, 4)]
    fill += [f"    v_lshl_add_u32 v{P+13}, {vL}, 2, {sSc}"]
    v = f"v{P+12}"
    steps = [f"row_shr:{sh} row_mask:0xf" for sh in (1, 2, 4, 8)] + ["row_bcast:15 row_mask:0xa", "row_bcast:31 row_mask:0xc"]
    for k, st in enumerate(steps):
        if k < 4:
            A(fill[2*k]); A(fill[2*k+1])
        else:
            A("    s_nop 1")
        A(f"    v_add_u32_dpp {v}, {v}, {v} {st} bank_mask:0xf")
    A(f"""    s_nop 0
    v_readlane_b32 {sTot}, {v}, 63
    {f's_movk_i32 {sTot}, 3136' if E3 else ''}
    v_subrev_u32 v{P+12}, {sF0}, v{P+12}
    v_sub_u32 v{P+8}, v{P+12}, v{P+7}
    s_min_u32 {sLim}, {sLim}, {sTot}
    s_cmp_lt_u32 {sF0}, {sLim}
    s_cbranch_scc0 K2_NOWIN
    v_add_u32 v{P+9}, v{P+8}, v{P+4}
    v_add_u32 v{P+10}, v{P+8}, v{P+5}
    v_add_u32 v{P+11}, v{P+8}, v{P+6}""")
    for i in range(4):
        A(f"    v_sub_u32 v{P+i}, v{P+i}, v{P+8+i}")
    for i in range(5):
        A(f"    v_med3_i32 v{P+8+i}, v{P+8+i}, 0, {sT2}")
    for i in range(4):
        A(f"    v_cmp_gt_i32 s[{MASK+2*i}:{MASK+2*i+1}], v{P+9+i}, v{P+8+i}")
        A(f"    v_lshl_add_u32 v{P+4+i}, v{P+8+i}, 2, {sSc}")
    for i in range(4):
        A(f"    s_mov_b64 exec, s[{MASK+2*i}:{MASK+2*i+1}]")
        A(f"    ds_write_b32 v{P+4+i}, v{P+i}")
    A("    s_mov_b64 exec, -1")
    A("    ;@STAMP 11")
    IX = 88
    E3A = ""
    if E3:
        E3A = f"""K2_E3:
    s_min_u32 {sT}, s2, 249
    s_and_b32 {sT2}, {sT}, 7
    s_lshl_b32 {sT2}, {sT2}, 5
    s_lshr_b32 {sT}, {sT}, 3
    s_add_u32 {sT}, {sT}, {sT2}
    s_mul_i32 {sT}, {sT}, 3200
    s_add_u32 {sT}, {sT}, {sF0}
    s_mov_b32 {sT2}, {sT}
    s_mov_b32 {sRem}, {sT}
    v_mov_b32 v{IX}, {sT}
    v_mov_b32 v{IX+1}, {sT}
    v_mov_b32 v{IX+2}, {sT}
    v_mov_b32 v{IX+3}, {sT}"""
    for i in range(4):
        A(f"    ds_read_b32 v{IX+i}, v{P+13} offset:{256*i}")
    A(f"    s_sub_u32 {sT}, {sLim}, {sF0}")
    pos = [vL] + [f"v{P+16+i}" for i in range(1, 4)]
    for i in range(4):
        A(f"    v_cmp_gt_u32 s[{MASK+2*i}:{MASK+2*i+1}], {sT}, {pos[i]}")
    A("    s_waitcnt lgkmcnt(0)")
    for st in steps:
        for i in range(4):
            A(f"    v_max_u32_dpp v{IX+i}, v{IX+i}, v{IX+i} {st} bank_mask:0xf")
    A(f"""    ;@STAMP 12
    v_readlane_b32 {sT}, v{IX}, 63
    v_readlane_b32 {sT2}, v{IX+1}, 63
    v_readlane_b32 {sRem}, v{IX+2}, 63
    {E3A}
    v_add_u32 v{IX}, v{IX}, {vL}
    s_max_u32 {sT2}, {sT2}, {sT}
    s_max_u32 {sRem}, {sRem}, {sT2}
    global_load_ubyte v80, v{IX}, {sBYT} {RPOL}
    v_max_u32 v{IX+1}, {sT}, v{IX+1}
    v_max_u32 v{IX+2}, {sT2}, v{IX+2}
    v_max_u32 v{IX+3}, {sRem}, v{IX+3}""")
    for i in range(1, 4):
        A(f"    v_add_u32 v{IX+i}, v{IX+i}, {pos[i]}")
        A(f"    global_load_ubyte v{80+i}, v{IX+i}, {sBYT} {RPOL}")
    for i in range(4):
        A(f"    v_lshlrev_b32 v{IX+i}, 4, v{IX+i}")
    A(f"""    ;@STAMP 13
    s_barrier""")
    def recload(i):
        A(f"    global_load_dwordx4 v[{RAW+4*i}:{RAW+4*i+3}], v{IX+i}, {sWS} {RPOL}")
    for i in range(NE): recload(i)
    def xwarm():
        A(f"""    s_lshr_b32 {sT2}, s2, 3
    s_mul_i32 {sT2}, {sT2}, {391*512}
    v_lshl_add_u32 v127, {sWave}, 6, {vL}
    v_cmp_gt_u32 vcc, {XWN}, v127
    v_and_b32 v125, 1, v127
    v_lshrrev_b32 v127, 1, v127
    v_lshlrev_b32 v127, 9, v127
    v_lshl_add_u32 v127, v125, 7, v127
    v_add_u32 v127, {sT2}, v127
    v_mov_b32 v125, 0x7fffff00
    v_cndmask_b32 v127, v125, v127, vcc
    buffer_load_dword v127, v127, {sX}, 0 offen {XPOL}""")
    if XW == 3: xwarm()
    A(f"""    ;@STAMP 14
    s_branch K2_ISSUED
K2_NOWIN:""")
    for i in range(4):
        A(f"    s_mov_b64 s[{MASK+2*i}:{MASK+2*i+1}], 0")
        if i >= NE: A(f"    v_mov_b32 v{IX+i}, 0")
    A(f"""    s_waitcnt lgkmcnt(0)
    s_barrier
K2_ISSUED:
    ;@STAMP 2
    s_cmp_lg_u32 {sR0}, 0
    s_cbranch_scc1 K2_NOW
    v_bfe_u32 v2, {vL}, 3, 2
    s_and_b32 {sT}, {sWave}, 3
    v_xor_b32 v2, {sT}, v2
    v_and_b32 v3, 3, {vL}
    v_lshlrev_b32 v3, 3, v3
    v_lshl_add_u32 v3, v2, 5, v3
    v_bfe_u32 v2, {vL}, 2, 2
    v_lshl_add_u32 v3, v2, 7, v3
    v_lshrrev_b32 v2, 4, {vL}
    v_lshl_add_u32 v3, v2, 10, v3""")
    if DF:
        A(f"""    v_mov_b32 v4, {CNTL+51*4}
    s_cmp_lt_u32 {sWave}, 14
    s_cbranch_scc1 K2_WPOLL
    v_mov_b32 v5, 4
    s_waitcnt vmcnt(0)
    s_mov_b64 exec, 1
    ds_add_u32 v4, v5
    s_mov_b64 exec, -1
K2_WPOLL:
    ds_read_b32 v5, v4
    s_waitcnt lgkmcnt(0)
    v_readfirstlane_b32 {sT}, v5
    s_cmp_lt_u32 {sT}, 8
    s_cbranch_scc1 K2_WPOLL""")
    for f in range(0 if E4 & 1 else 10):
        for u in range(2):
            A(f"    ds_read_b64_tr_b16 v[{WW+4*f+2*u}:{WW+4*f+2*u+1}], v3 offset:{f*4096+u*512}")
    A(f"""    s_cmp_lt_u32 {sWave}, {99 if E4 & 2 else 14}
    s_cbranch_scc1 K2_NOW
    s_cmp_eq_u32 {sWave}, 15
    s_cselect_b32 {sRem}, 0x80000000, 0
    s_cselect_b32 {sT}, 384, 0
    s_movk_i32 {sT2}, 256
    s_cmovk_i32 {sT2}, 128
    v_lshl_add_u32 v2, {vL}, 1, {sT}
    v_add_u32 v3, {sT2}, v2""")
    for k in range(3):
        for d in range(4):
            A(f"    ds_read_u16 v{RAW+4*k+d}, v{2 if k < 2 else 3} offset:{RADL+640*d+(128 if k == 1 else 0)}")
    A(f"""    s_add_u32 {sT}, {sT}, {WZL}
    v_and_b32 v2, 7, {vL}
    v_mul_u32_u24 v2, 768, v2
    v_lshrrev_b32 v3, 3, {vL}
    v_lshlrev_b32 v3, 4, v3
    v_add3_u32 v2, v2, v3, {sT}
    s_waitcnt lgkmcnt(0)""")
    for k in range(3):
        for d in range(4):
            A(f"    v_lshlrev_b32 v{RAW+4*k+d}, 16, v{RAW+4*k+d}")
            if k == 2: A(f"    v_xor_b32 v{RAW+4*k+d}, {sRem}, v{RAW+4*k+d}")
        A(f"    ds_write_b128 v2, v[{RAW+4*k}:{RAW+4*k+3}] offset:{128*k}")
    A(f"""K2_NOW:
    v_mov_b32 v{P+13}, 1
    s_mov_b32 {sT}, {CNTL}
    v_lshrrev_b32 v{P}, 4, {vL}            ; g
    v_lshlrev_b32 {vZw}, 9, v{P}
    v_lshlrev_b32 v{P}, 4, v{P}
    v_add_u32 v{P}, {RECL}, v{P}           ; REC + g*16
    v_and_b32 v{P+1}, 3, {vL}              ; d
    v_lshl_add_u32 {vA}, v{P+1}, 1, v{P}
    {VSI}
    v_bfe_u32 v{P+1}, {vL}, 2, 2
    v_lshl_add_u32 {vY}, v{P+1}, 1, v{P}
    v_add_u32 {vY}, 6, {vY}
    v_and_b32 {vCol}, 15, {vL}
    v_lshlrev_b32 {vCol}, 4, {vCol}
    v_add_u32 {vZw}, {vZw}, {vCol}         ; j*512 + n*16
    s_mov_b32 {sPos}, 0
    v_mov_b32 v{P+4}, {QW}
    v_mov_b32 v{P+5}, 16
    v_mov_b32 v{vZero+3}, 0x7fff0000""")
    for i in range(4):
        A(f"    s_waitcnt vmcnt({NE+3-i+(XW==3)})")
        if i == 3: A("    ;@STAMP 3")
        A(f"    s_mov_b64 exec, s[{MASK+2*i}:{MASK+2*i+1}]")
        A(f"    v_lshl_add_u32 v{80+i}, v{80+i}, 2, {sT}")
        A(f"    ds_add_rtn_u32 v{84+i}, v{80+i}, v{P+13}")
    A(f"""    s_mov_b64 exec, 1
    ds_write_b32 v{P+4}, v{P+5}
    s_mov_b64 exec, -1""")
    if XW == 4: xwarm()
    A(f"""\
    s_cmp_eq_u64 s[{MASK}:{MASK+1}], 0
    s_waitcnt lgkmcnt(0)
    s_barrier
    ;@STAMP 4
    ds_read_b32 v{P}, v{P+14}""")
    if NE < 4:
        A("    s_cbranch_scc1 K2_NOREC")
        for i in range(NE, 4): recload(i)
        A("K2_NOREC:")
    A(f"""    s_waitcnt lgkmcnt(0)
    v_add_u32 v{P+1}, 3, v{P}
    v_and_b32 v{P+1}, -4, v{P+1}
    v_mov_b32 v{P+2}, v{P+1}""")
    dpp_scan(f"v{P+2}")
    A(f"""    v_sub_u32 v{P+3}, v{P+2}, v{P}
    v_sub_u32 v{P+2}, v{P+2}, v{P+1}       ; base
    s_mov_b32 {sT}, {RECL}
    v_lshl_or_b32 {vBP}, v{P+1}, 16, v{P+2}
    s_cbranch_scc1 K2_NOSCAT""")
    for i in range(4):
        A(f"    ds_bpermute_b32 v{80+i}, v{80+i}, v{P+3}")
    for i in range(4):
        A(f"    s_waitcnt lgkmcnt({3-i})")
        A(f"    v_add_u32 v{80+i}, v{80+i}, v{84+i}")
        A(f"    v_lshl_add_u32 v{80+i}, v{80+i}, 4, {sT}")
    for i in range(4):
        A(f"    s_mov_b64 exec, s[{MASK+2*i}:{MASK+2*i+1}]")
        A(f"    s_waitcnt vmcnt({3-i+(XW in (3,4))})")
        A(f"    ds_write_b128 v{80+i}, v[{RAW+4*i}:{RAW+4*i+3}]")
    A(f"""    s_mov_b64 exec, -1
K2_NOSCAT:
    s_sub_u32 {sT2}, {sWave}, 13
    s_cbranch_scc1 K2_NOPAD
    v_add_u32 v{P+2}, {sT2}, v{P+2}
    v_cmp_lt_u32 vcc, v{P+2}, v{P+3}
    v_lshl_add_u32 v{P+2}, v{P+2}, 4, {sT}
    s_mov_b64 exec, vcc
    ds_write_b128 v{P+2}, v[{vZero}:{vZero+3}]
    s_mov_b64 exec, -1""")
    if XW in (1, 2):
        A(f"""    s_cmp_lt_u32 {sWave}, 14
    s_cbranch_scc1 K2_NOPAD
    s_cmp_lg_u32 {sR0}, 0
    s_cbranch_scc1 K2_NOPAD
    s_lshl_b32 {sT}, {sWave}, 7
    s_mul_i32 {sT2}, s2, {NPB*512}
    s_and_b32 {sT}, {sT}, 128
    s_add_u32 {sT}, {sT}, {sT2}
    v_min_u32 v{P}, {NPB-1}, {vL}
    v_lshl_add_u32 v{P}, v{P}, 9, {sT}
    buffer_load_dword v{P+20}, v{P}, {sX}, 0 offen""")
        if XW == 2:
            A(f"    buffer_load_dword v{P+21}, v{P}, {sX}, 0 offen offset:256")
    A(f"""K2_NOPAD:
    s_mov_b32 {sItem}, {sWave}
    s_mov_b32 {sH}, -1
    s_mov_b32 {sGC}, {QW+4}
    s_waitcnt lgkmcnt(0)
    s_barrier
    ;@STAMP 5
    ;@CLK 0
    {'s_setprio 2' if PRIO else ''}
K2_ITEM:
    v_mov_b32 v{TM}, {QW}
    v_mov_b32 v{TM+1}, 1
    v_writelane_b32 v{TM}, {sGC}, 1
    s_mov_b64 exec, 3
    ds_add_rtn_u32 {vItem}, v{TM}, v{TM+1}
    s_mov_b64 exec, -1
    s_cmp_ge_u32 {sItem}, {sNN2}
    s_cbranch_scc1 K2_DONE
    s_cmp_ge_u32 {sItem}, {sNN}
    s_cselect_b32 {sT}, 1, 0
    s_cselect_b32 {sT2}, {sNN}, 0
    {f's_cselect_b32 {sBP}, 16, 0' if F2 else ''}
    s_sub_u32 {sNode}, {sItem}, {sT2}
    s_sub_u32 {sNode}, {sNode}, 1
    s_cselect_b32 {sNode}, {sNL}, {sNode}
    s_add_u32 {sPf}, {sNode}, {sN0}
    s_lshl_b32 {sPf}, {sPf}, 9
    s_lshr_b32 {sGC}, {sNode}, 4
    s_lshl2_add_u32 {sGC}, {sGC}, {CNTL+(224 if F2 else 240)}
    {f's_add_u32 {sGC}, {sGC}, {sBP}' if F2 else ''}
    s_cmp_eq_u32 {sT}, {sH}
    v_readlane_b32 {sBP}, {vBP}, {sNode}
    s_cbranch_scc1 K2_SAMEH
    s_mov_b32 {sH}, {sT}
    ;@STAMP 6
    s_lshl_b32 {sSoff}, {sH}, 8
    {f's_mul_i32 s57, {sH}, 3200000' if CH == 1 else ''}
    v_mbcnt_lo_u32_b32 v{TM+2}, -1, 0
    s_mov_b32 {sT2}, {hex(lut(VAR,0))}
    s_cmov_b32 {sT2}, {hex(lut(VAR,1))}
    v_mbcnt_hi_u32_b32 v{TM+2}, -1, v{TM+2}
    v_and_b32 v{TM+3}, 0x70, {vCol}
    v_lshrrev_b32 v{TM+2}, 3, v{TM+2}
    v_lshlrev_b32 v{TM+2}, 2, v{TM+2}
    v_bfe_u32 {vWz}, {sT2}, v{TM+2}, 4
    v_lshl_add_u32 {vWz}, {vWz}, 7, v{TM+3}
    v_add_u32 {vWz}, {WZL}, {vWz}
K2_SAMEH:
    s_lshr_b32 {sRem}, {sBP}, 16
    s_cbranch_scc0 K2_EMPTY
    s_and_b32 {sT2}, {sRem}, 4
    s_cselect_b32 {sAm}, 0, -1
    s_add_u32 {sRem}, {sRem}, {sT2}
    s_and_b32 {sT}, {sBP}, 0xffff
    s_sub_u32 {sT}, {sT}, {sT2}
    s_lshl_b32 {sT}, {sT}, 4
    s_sub_u32 {sDelta}, {sT}, {sPos}
    s_mov_b32 {sPos}, {sT}
    s_and_b32 {sT}, {sRem}, 31
    s_cmp_eq_u32 {sT}, 8
    s_cbranch_scc1 K2_F1
    s_cmp_eq_u32 {sT}, 16
    s_cbranch_scc1 K2_F2
    s_cmp_eq_u32 {sT}, 24
    s_cbranch_scc1 K2_F3""")
    for nq in (4, 1, 2, 3):
        A(f"K2_F{nq}:")
        kstep(nq, True)
        A(f"    s_movk_i32 {sDelta}, {nq*128}")
        A(f"    s_sub_u32 {sRem}, {sRem}, {nq*8}")
        A(f"    s_cmp_eq_u32 {sRem}, 0")
        A(f"    s_cbranch_scc1 K2_EPI")
        if nq != 3:
            A(f"    s_branch K2_LOOP")
    A("K2_LOOP:")
    A(f"    s_add_u32 {sPos}, {sPos}, {sDelta}")
    kstep(4, False)
    A(f"""    s_movk_i32 {sDelta}, 512
    s_sub_u32 {sRem}, {sRem}, 32
    s_cmp_eq_u32 {sRem}, 0
    s_cbranch_scc0 K2_LOOP
K2_EPI:""")
    for t in range(8):
        A(f"    ds_read_b128 v[{RAW+4*t}:{RAW+4*t+3}], {vWz} offset:{768*t}")
    def zaddr():
        A(f"""    s_lshl_b32 {sT}, {sNode}, 11
    s_and_b32 {sT2}, {sNode}, 7
    s_lshl_b32 {sT2}, {sT2}, 5
    s_or_b32 {sT}, {sT}, {sT2}
    s_or_b32 {sT}, {sT}, {sSoff}
    v_xor_b32 v{TM}, {sT}, {vZw}""")
    zaddr()
    A(f"""    v_readfirstlane_b32 {sItem}, {vItem}
    s_cmp_eq_u32 {sR0}, 0""")
    for q in range(4):
        A(f"    s_waitcnt lgkmcnt({6-2*q})")
        for r in range(4):
            for t in (2*q, 2*q+1):
                op = "v_mul_f32" if r == 0 else "v_fmac_f32"
                A(f"    {op} v{BT+t}, v{RAW+4*t+r}, v{ACC+4*t+r}")
    A("    s_cbranch_scc0 K2_ACC")
    A("K2_NOACC:")
    for q in range(4):
        A(f"    v_cvt_pk_bf16_f32 v{AF+q}, v{BT+2*q}, v{BT+2*q+1}")
    A(f"""    ds_write_b128 v{TM}, v[{AF}:{AF+3}]
    s_branch K2_ITEM
K2_ACC:
    ds_read_b128 v[{AF}:{AF+3}], v{TM}
    s_waitcnt lgkmcnt(0)""")
    for q in range(4):
        A(f"    v_lshlrev_b32 v{TM+1}, 16, v{AF+q}")
        A(f"    v_and_b32 v{TM+2}, 0xffff0000, v{AF+q}")
        A(f"    v_add_f32 v{BT+2*q}, v{BT+2*q}, v{TM+1}")
        A(f"    v_add_f32 v{BT+2*q+1}, v{BT+2*q+1}, v{TM+2}")
    A(f"""    s_branch K2_NOACC
K2_EMPTY:
    s_waitcnt lgkmcnt(0)
    v_readfirstlane_b32 {sItem}, {vItem}
    s_cmp_eq_u32 {sR0}, 0
    s_cbranch_scc0 K2_ITEM""")
    zaddr()
    A(f"""    v_mov_b64 v[{AF}:{AF+1}], 0
    v_mov_b64 v[{AF+2}:{AF+3}], 0
    ds_write_b128 v{TM}, v[{AF}:{AF+3}]
    s_branch K2_ITEM
K2_DONE:
    {'s_setprio 0' if PRIO else ''}
    ;@STAMP 7
    ;@CLK 1
    s_add_u32 {sF0}, {sF0}, {RND}
    s_add_u32 {sR0}, {sR0}, {RND}
    s_cmp_lt_u32 {sR0}, {sTot}
    v_mbcnt_lo_u32_b32 v0, -1, 0
    v_mbcnt_hi_u32_b32 v0, -1, v0          ; lane
    s_waitcnt vmcnt(0) lgkmcnt(0)
    s_cbranch_scc0 K2_LAST
    v_mov_b32 {vL}, v0
    s_barrier
    s_branch K2_ROUND
K2_LAST:""")
    if F2: final2()
    else:
        A(f"""    s_and_b32 {sT}, {sWave}, 12
    s_lshl_b32 {sNode}, {sT}, 2
    s_cmp_ge_u32 {sNode}, {sNN}
    s_cbranch_scc1 K2_END
    s_add_u32 {sT}, {sT}, {CNTL+240}
    v_mov_b32 v124, {sT}
    s_sub_u32 {sRem}, {sNN}, {sNode}
    s_min_u32 {sRem}, {sRem}, 16
    s_lshl_b32 {sRem}, {sRem}, 1
    v_and_b32 v2, 15, v0
    v_add_u32 v2, {sNode}, v2
    v_lshrrev_b32 v3, 4, v0                ; g
    v_and_b32 v4, 7, v2
    v_lshlrev_b32 v4, 1, v4
    v_xor_b32 v4, v4, v3
    v_lshlrev_b32 v4, 4, v4
    v_lshl_add_u32 v4, v2, 11, v4
    v_xor_b32 v5, 64, v4
    v_xor_b32 v6, 128, v4
    v_xor_b32 v7, 192, v4
    s_and_b32 {sT}, {sWave}, 3
    s_lshl_b32 {sT2}, {sT}, 5
    v_and_b32 v1, 15, v0
    v_lshl_add_u32 v1, v1, 4, {sT2}
    v_lshl_add_u32 v1, v3, 3, v1
    v_lshl_add_u32 v1, v2, 11, v1
    v_cmp_gt_u32 s[{MASK}:{MASK+1}], {sNN}, v2
    v_lshrrev_b32 v2, 5, v0
    v_lshl_add_u32 v2, {sT}, 2, v2
    v_and_b32 v3, 31, v0
    v_add_u32 v3, v3, v2
    v_add_u32 v2, {sNode}, v2
    v_lshlrev_b32 v3, 4, v3
    v_lshl_add_u32 v3, v2, 11, v3
    v_cmp_gt_u32 s[{MASK+2}:{MASK+3}], {sNN}, v2
    v_add_u32 v2, 2, v2
    v_cmp_gt_u32 s[{MASK+4}:{MASK+5}], {sNN}, v2
    s_lshl2_add_u32 {sT}, {sT}, {sNode}
    s_add_u32 {sT}, {sT}, {sN0}
    s_lshl_b32 {sT}, {sT}, 9
    v_lshl_add_u32 v0, v0, 4, {sT}
    v_mov_b32 v2, 1
K2_WAITG:
    ds_read_b32 v125, v124
    s_waitcnt lgkmcnt(0)
    v_readfirstlane_b32 {sT}, v125
    s_cmp_lt_u32 {sT}, {sRem}
    s_cbranch_scc1 K2_WAITG
    ;@STAMP 8""")
        terms = [(0, 0, 0), (1, 4, 2), (2, 8, 2), (3, 12, 2),
                 (0, 5, 1), (1, 1, 3), (2, 2, 3), (3, 3, 3),
                 (0, 10, 1), (1, 11, 4), (2, 13, 4), (3, 6, 4),
                 (0, 15, 1), (1, 14, 4), (2, 7, 4), (3, 9, 4)]
        seq = [(c, jk, blk, s) for s in range(2) for (c, jk, blk) in terms]
        seq = seq[:25] + [seq[28]] + seq[25:28] + seq[29:]
        NS = len(seq)
        OUT = 8
        ZR = 64
        NBUF = 14
        started = set()
        CA = 124
        def arrive():
            A(f"""    s_mov_b64 exec, 1
    ds_add_u32 v{CA}, v2
    s_mov_b64 exec, -1
    s_add_u32 {sRem}, {sRem}, 4""")
        def zread(k):
            c, zb, blk, s = seq[k]
            r = ZR + 4 * (k % NBUF)
            A(f"    ds_read_b128 v[{r}:{r+3}], v{4+(zb&1)*2+s} offset:{(zb>>1)*256}")
        for k in range(NBUF):
            zread(k)
        for k in range(NS):
            c, zb, blk, s = seq[k]
            issued = min(NS, k + NBUF)
            A(f"    s_waitcnt lgkmcnt({issued-k-1+(1 if k+NBUF >= NS else 0)})")
            r = ZR + 4 * (k % NBUF)
            w = WW + 4 * (blk * 2 + s)
            cc = f"v[{OUT+4*c}:{OUT+4*c+3}]" if c in started else "0"
            started.add(c)
            A(f"    v_mfma_f32_16x16x32_bf16 v[{OUT+4*c}:{OUT+4*c+3}], v[{w}:{w+3}], v[{r}:{r+3}], {cc}")
            if k + NBUF < NS:
                zread(k + NBUF)
                if k + NBUF == NS - 1: arrive()
        G = 120; O = 24
        def waitg(lbl):
            A(f"""{lbl}:
    ds_read_b32 v{CA+1}, v{CA}
    s_waitcnt lgkmcnt(0)
    v_readfirstlane_b32 {sT}, v{CA+1}
    s_cmp_lt_u32 {sT}, {sRem}
    s_cbranch_scc1 {lbl}""")
        A(f"    s_mov_b32 {sT}, 0xbfb8aa3b")
        for r in range(4):
            A(f"    v_mul_f32 v{G+r}, {sT}, v{OUT+r}")
        for r in range(4):
            A(f"    v_exp_f32 v{G+r}, v{G+r}")
        A(f"    v_cvt_pk_bf16_f32 v{O}, v{OUT}, v{OUT+1}")
        for r in range(4):
            A(f"    v_add_f32 v{G+r}, 1.0, v{G+r}")
        for r in range(4):
            A(f"    v_rcp_f32 v{G+r}, v{G+r}")
        A(f"    v_cvt_pk_bf16_f32 v{O+1}, v{OUT+2}, v{OUT+3}")
        for c in range(1, 4):
            for r in range(4):
                A(f"    v_mul_f32 v{OUT+4*c+r}, v{OUT+4*c+r}, v{G+r}")
            A(f"    v_cvt_pk_bf16_f32 v{O+2*c}, v{OUT+4*c}, v{OUT+4*c+1}")
            A(f"    v_cvt_pk_bf16_f32 v{O+1+2*c}, v{OUT+4*c+2}, v{OUT+4*c+3}")
        waitg("K2_WAITR")
        A(f"    s_mov_b64 exec, s[{MASK}:{MASK+1}]")
        for c in range(4):
            A(f"    ds_write_b64 v1, v[{O+2*c}:{O+1+2*c}] offset:{128*c}")
        arrive()
        waitg("K2_WAITX")
        A(f"""    ds_read_b128 v[8:11], v3
    ds_read_b128 v[12:15], v3 offset:{2*2048+32}
    s_mov_b64 exec, s[{MASK+2}:{MASK+3}]
    s_cbranch_execz K2_OUT
    s_waitcnt lgkmcnt(1)
    global_store_dwordx4 v0, v[8:11], s[6:7] {OPOL}
    s_mov_b64 exec, s[{MASK+4}:{MASK+5}]
    s_cbranch_execz K2_OUT
    s_waitcnt lgkmcnt(0)
    global_store_dwordx4 v0, v[12:15], s[6:7] offset:1024 {OPOL}
K2_OUT:""")
    if STAMPS:
        A(f"""    ;@STAMP 9
    s_waitcnt vmcnt(0)
    ;@STAMP 10
    ;@STAMPOUT 1 {sWS} {sWave}""")
    A("""K2_END:
    s_endpgm""")

def kd(name, vgpr, sgpr):
    A(".p2align 6")
    A(f""".amdhsa_kernel {name}
  .amdhsa_next_free_vgpr {vgpr}
  .amdhsa_next_free_sgpr {sgpr}
  .amdhsa_accum_offset {(vgpr+3)//4*4}
  .amdhsa_group_segment_fixed_size 0
  .amdhsa_kernarg_size 96
  .amdhsa_user_sgpr_count 2
  .amdhsa_user_sgpr_kernarg_segment_ptr 1
  .amdhsa_system_sgpr_workgroup_id_x 1
  .amdhsa_float_denorm_mode_32 3
.end_amdhsa_kernel""")

A(HEADER)
A(f"; @launch kernel=bin_kernel grid=(256,1,1) block=({K1_THR},1,1) lds={K1_LDS}")
A(f"; @launch kernel=agg_kernel grid=(256,1,1) block=(1024,1,1) lds={K2_LDS}")
A('.amdgcn_target "amdgcn-amd-amdhsa--gfx950"')
A(".text")
A(".globl bin_kernel")
A(".globl agg_kernel")
gen_k1()
gen_k2()
A('.section .rodata,"a"')
kd("bin_kernel", 64, 88 if STAMPS else 32)
kd("agg_kernel", 128, 88 if STAMPS else 64)
def place_pads():
    import subprocess, re
    global L
    open("_pad.s", "w").write("\n".join(L) + "\n")
    subprocess.run(["clang", "-x", "assembler", "-target", "amdgcn-amd-amdhsa", "-mcpu=gfx950", "-c", "_pad.s", "-o", "_pad.o"], check=True)
    d = subprocess.run(["llvm-objdump", "-d", "_pad.o"], capture_output=True, text=True).stdout
    d = d[d.index("<agg_kernel>:"):]
    addrs = [int(m.group(1), 16) for m in re.finditer(r"// ([0-9A-F]+):", d)]
    L = "\n".join(L).split("\n")
    k0 = L.index("agg_kernel:")
    outl = L[:k0+1]; n = 0; ia = 0; last = -10**9; full = True; prev = ""
    for ln in L[k0+1:]:
        t = ln.split(";")[0].strip()
        isins = t and not t.endswith(":") and not t.startswith(".") and ia < len(addrs)
        if isins:
            want = addrs[ia] - last
            near = t.startswith("s_waitcnt") or prev.startswith("s_branch")
            ok = full and not t.startswith("s_cbranch") and not t.startswith("s_endpgm")
            if ok and (want >= IWS or (near and want >= IWS * 2 // 3)):
                outl.append(f"K2_P{n}:"); outl.append(f"    s_cbranch_execz @{n}"); n += 1; last = addrs[ia]
            if re.match(r"s_\w+ exec", t): full = t.endswith("exec, -1")
            ia += 1; prev = t
        outl.append(ln)
    per = -(-n // IW)
    res = []
    for ln in outl:
        m = re.match(r"    s_cbranch_execz @(\d+)", ln)
        if m:
            k = int(m.group(1))
            ln = "    s_cbranch_execz " + ("K2_END" if (k + 1) % per == 0 or k + 1 == n else f"K2_P{k+1}")
        if ln == ";@WALK":
            res.append("    s_mov_b64 exec, 0")
            for w in range(IW):
                if w * per < n:
                    res.append(f"    s_cmp_eq_u32 s23, {64*w}")
                    res.append(f"    s_cbranch_scc1 K2_P{w*per}")
            continue
        res.append(ln)
    L = res
    print("pads", n, "per", per)
if IW: place_pads()
out = sys.argv[1] if len(sys.argv) > 1 else "standalone__tensor_product_equiv_equiformer__graph.s"
open(out, "w").write("\n".join(L) + "\n")
print("wrote", out, len(L), "lines")
```
